```python
import torch

def _softmax(x, axis=-1):
    return torch.softmax(x, dim=axis)
def _gelu(x):
    return torch.nn.functional.gelu(x, approximate="tanh")
def _silu(x):
    return torch.nn.functional.silu(x)
def _sigmoid(x):
    return torch.sigmoid(x)
def _layernorm(x, axis=-1, eps=1e-5):
    m = x.mean(dim=axis, keepdim=True)
    v = x.var(dim=axis, keepdim=True, unbiased=False)
    return (x - m) / torch.sqrt(v + eps)
def _scatter_add(tgt, idx, src, axis=0):
    return tgt.clone().index_add_(axis, idx, src)
def _segment_sum(src, seg, n):
    out = torch.zeros((n,) + src.shape[1:], dtype=src.dtype)
    return out.index_add_(0, seg, src)
def _pad(x, pw):
    flat = tuple(v for pair in reversed(pw) for v in pair)
    return torch.nn.functional.pad(x, flat)

kernel_name = 'standalone__gqa_block_cached__near_ridge'

def setup_inputs():

    _w = (lambda a: (lambda t: t.to(torch.bfloat16) if t.is_floating_point() else t)(torch.as_tensor(a)))
    B, Sq, D = 8, 112, 640
    Hq, Hkv, Sk, Dh = 32, 32, 512, 128
    assert Hq % Hkv == 0, (Hq, Hkv)
    return {
        "x": _w((lambda *s: torch.randn(*s, dtype=torch.bfloat16) * 0.8)(B, Sq, D)),
        "k_cache": _w((lambda *s: torch.randn(*s, dtype=torch.bfloat16) * 0.8)(B, Hkv, Sk, Dh)),
        "v_cache": _w((lambda *s: torch.randn(*s, dtype=torch.bfloat16) * 0.05)(B, Hkv, Sk, Dh)),
        "wq": _w((lambda *s: torch.randn(*s, dtype=torch.bfloat16) * 0.8)(D, Hq * Dh) * (D ** -0.5)),
        "wo": _w((lambda *s: torch.randn(*s, dtype=torch.bfloat16) * 0.05)(Hq * Dh, D) * ((Hq * Dh) ** -0.5)),
    }

def reference(x, k_cache, v_cache, wq, wo):
    B, Sq, D = x.shape
    Hq, Dh = 32, 128
    Hkv = k_cache.shape[1]
    rep = Hq // Hkv
    q = (lambda x, *d: x.permute(*d))((x @ wq).reshape(B, Sq, Hq, Dh), 0, 2, 1, 3)
    k = (lambda x, n, axis: torch.repeat_interleave(x, n, dim=axis))(k_cache, rep, axis=1)
    v = (lambda x, n, axis: torch.repeat_interleave(x, n, dim=axis))(v_cache, rep, axis=1)
    scores = torch.einsum("bhqd,bhkd->bhqk", q, k) * (Dh ** -0.5)
    p = _softmax(scores, axis=-1)
    o = torch.einsum("bhqk,bhkd->bhqd", p, v)
    return (lambda x, *d: x.permute(*d))(o, 0, 2, 1, 3).reshape(B, Sq, Hq * Dh) @ wo
```

```python
import sys

OFF_O    = 0
OFF_WOT  = 8 << 20
OFF_PART = 16 << 20
WS_BYTES = 268435456

class A:
    def __init__(s): s.l = []
    def __call__(s, x): s.l.append("    " + x)
    def lab(s, x): s.l.append(x + ":")
    def c(s, x): s.l.append("    ; " + x)
    def nop(s, n):
        while n > 0:
            k = min(n, 16); s("s_nop %d" % (k - 1)); n -= k
    def text(s): return "\n".join(s.l) + "\n"

def vr(b, n): return "v[%d:%d]" % (b, b + n - 1)
def ar(b, n): return "a[%d:%d]" % (b, b + n - 1)

def gen_k1(a):
    SLOT = 16384
    NSLOT = 10
    sX, sK, sV, sW, sO, sWO = 8, 12, 16, 20, 24, 28
    sWv = 32
    sW4k = 33
    sB, sH = 34, 35
    sT0, sT1, sT2, sT3 = 36, 37, 38, 39
    sXoff = 40
    sC = 41
    sWoff = 42
    vTid = 0
    vL = 1
    vKd = 2
    vVd = 6
    vWd = 7
    vXd = 11
    vXr = 15
    vTr = 19
    vKr = 23
    vT = 31
    vM, vLsum, vMC, vF = 39, 40, 41, 42
    vt0, vt1, vt2, vt3 = 43, 44, 45, 46
    vOst = 47
    vQ = 48
    vFB = 80
    vS = 128
    aO = 0

    a.lab("k1_kernel")
    a("s_cmp_ge_u32 s2, 256")
    a("s_cbranch_scc1 k1_done")
    a("s_load_dwordx4 s[4:7], s[0:1], 0")
    a("s_load_dwordx4 s[44:47], s[0:1], 16")
    a("s_load_dwordx2 s[48:49], s[0:1], 32")
    a("s_load_dwordx2 s[50:51], s[0:1], 56")
    a("v_and_b32 v%d, 63, v0" % vL)
    a("v_lshrrev_b32 v%d, 6, v0" % vt0)
    a("s_nop 0")
    a("v_readfirstlane_b32 s%d, v%d" % (sWv, vt0))
    a("s_lshr_b32 s%d, s2, 5" % sB)
    a("s_and_b32 s%d, s2, 7" % sT0)
    a("s_lshl_b32 s%d, s%d, 2" % (sT0, sT0))
    a("s_lshr_b32 s%d, s2, 3" % sT1)
    a("s_and_b32 s%d, s%d, 3" % (sT1, sT1))
    a("s_add_u32 s%d, s%d, s%d" % (sH, sT0, sT1))
    a("s_lshl_b32 s%d, s%d, 12" % (sW4k, sWv))
    a("s_mov_b32 s%d, 0x3e0293ee" % sC)
    a("s_waitcnt lgkmcnt(0)")
    a("s_mov_b32 s%d, s4" % sX); a("s_and_b32 s%d, s5, 0xffff" % (sX+1)); a("s_mov_b32 s%d, %d" % (sX+2, 8*112*640*2)); a("s_mov_b32 s%d, 0x20000" % (sX+3))
    a("s_lshl_b32 s%d, s%d, 5" % (sT0, sB)); a("s_add_u32 s%d, s%d, s%d" % (sT0, sT0, sH))
    a("s_lshl_b32 s%d, s%d, 17" % (sT1, sT0))
    a("s_add_u32 s%d, s6, s%d" % (sK, sT1)); a("s_addc_u32 s%d, s7, 0" % (sK+1)); a("s_and_b32 s%d, s%d, 0xffff" % (sK+1, sK+1))
    a("s_mov_b32 s%d, 131072" % (sK+2)); a("s_mov_b32 s%d, 0x20000" % (sK+3))
    a("s_add_u32 s%d, s44, s%d" % (sV, sT1)); a("s_addc_u32 s%d, s45, 0" % (sV+1)); a("s_and_b32 s%d, s%d, 0xffff" % (sV+1, sV+1))
    a("s_mov_b32 s%d, 131072" % (sV+2)); a("s_mov_b32 s%d, 0x20000" % (sV+3))
    a("s_mov_b32 s%d, s46" % sW); a("s_and_b32 s%d, s47, 0xffff" % (sW+1)); a("s_mov_b32 s%d, %d" % (sW+2, 640*4096*2)); a("s_mov_b32 s%d, 0x20000" % (sW+3))
    a("s_mov_b32 s%d, s50" % sO); a("s_and_b32 s%d, s51, 0xffff" % (sO+1)); a("s_mov_b32 s%d, %d" % (sO+2, OFF_PART)); a("s_mov_b32 s%d, 0x20000" % (sO+3))
    a("s_mov_b32 s%d, s48" % sWO); a("s_and_b32 s%d, s49, 0xffff" % (sWO+1)); a("s_mov_b32 s%d, %d" % (sWO+2, 4096*640*2)); a("s_mov_b32 s%d, 0x20000" % (sWO+3))
    a("s_mul_i32 s%d, s%d, %d" % (sXoff, sB, 112*1280))
    a("s_lshl_b32 s%d, s%d, 8" % (sWoff, sH))

    l16 = vt0; lhi = vt1
    a("v_and_b32 v%d, 15, v%d" % (l16, vL))
    a("v_lshrrev_b32 v%d, 4, v%d" % (lhi, vL))
    for i in range(4):
        a("v_add_u32 v%d, %d, v%d" % (vt2, 4*i, lhi))
        a("v_xor_b32 v%d, v%d, v%d" % (vt2, vt2, l16))
        a("v_lshlrev_b32 v%d, 4, v%d" % (vt2, vt2))
        a("v_lshl_add_u32 v%d, v%d, 8, v%d" % (vt2, lhi, vt2))
        a("v_add_u32 v%d, %d, v%d" % (vKd+i, 1024*i, vt2))
        a("v_add_u32 v%d, s%d, v%d" % (vKd+i, sW4k, vKd+i))
    a("v_lshlrev_b32 v%d, 2, v%d" % (vt2, lhi))
    a("v_xor_b32 v%d, v%d, v%d" % (vt2, vt2, l16))
    a("v_lshlrev_b32 v%d, 4, v%d" % (vt2, vt2))
    a("v_lshl_add_u32 v%d, v%d, 8, v%d" % (vVd, lhi, vt2))
    a("v_add_u32 v%d, s%d, v%d" % (vVd, sW4k, vVd))
    a("s_lshl_b32 s%d, s%d, 17" % (sT0, sWv))
    for i in range(4):
        a("v_add_u32 v%d, %d, v%d" % (vt3, 4*i, lhi))
        a("v_lshl_add_u32 v%d, v%d, 13, v%d" % (vWd+i, vt3, vt2))
        a("v_add_u32 v%d, s%d, v%d" % (vWd+i, sT0, vWd+i))
    a("v_and_b32 v%d, 7, v%d" % (vt2, vL))
    a("v_lshrrev_b32 v%d, 3, v%d" % (vt3, vL))
    a("s_mul_i32 s%d, s%d, %d" % (sT0, sWv, 32*1280))
    a("s_mov_b32 s%d, 1280" % sT1)
    for i in range(4):
        a("v_add_u32 v%d, %d, v%d" % (vT, 4*i, lhi))
        a("v_and_b32 v%d, 7, v%d" % (vT, vT))
        a("v_xor_b32 v%d, v%d, v%d" % (vT, vT, vt2))
        a("v_lshlrev_b32 v%d, 4, v%d" % (vT, vT))
        a("v_add_u32 v%d, %d, v%d" % (vT+1, 8*i, vt3))
        a("v_mul_lo_u32 v%d, v%d, s%d" % (vT+1, vT+1, sT1))
        a("v_add_u32 v%d, v%d, v%d" % (vXd+i, vT, vT+1))
        a("v_add_u32 v%d, s%d, v%d" % (vXd+i, sT0, vXd+i))
    l31 = vt2; g = vt3
    a("v_and_b32 v%d, 31, v%d" % (l31, vL))
    a("v_lshrrev_b32 v%d, 5, v%d" % (g, vL))
    a("v_lshrrev_b32 v%d, 1, v%d" % (vT, l31))
    a("v_and_b32 v%d, 7, v%d" % (vT, vT))
    a("v_lshlrev_b32 v%d, 7, v%d" % (vT+1, l31))
    a("v_add_u32 v%d, s%d, v%d" % (vT+1, sW4k, vT+1))
    for kk in range(4):
        a("v_add_u32 v%d, %d, v%d" % (vT+2, 2*kk, g))
        a("v_xor_b32 v%d, v%d, v%d" % (vT+2, vT+2, vT))
        a("v_lshl_add_u32 v%d, v%d, 4, v%d" % (vXr+kk, vT+2, vT+1))
    def swap23(dst, src, t1, t2):
        a("v_and_b32 v%d, 0x13, v%d" % (dst, src))
        a("v_and_b32 v%d, 4, v%d" % (t1, src))
        a("v_and_b32 v%d, 8, v%d" % (t2, src))
        a("v_lshlrev_b32 v%d, 1, v%d" % (t1, t1))
        a("v_lshrrev_b32 v%d, 1, v%d" % (t2, t2))
        a("v_or3_b32 v%d, v%d, v%d, v%d" % (dst, dst, t1, t2))
    swap23(vT, l31, vT+1, vT+2)
    a("v_and_b32 v%d, 15, v%d" % (vT+1, vT))
    for ks in range(8):
        a("v_add_u32 v%d, %d, v%d" % (vT+2, 2*ks, g))
        a("v_xor_b32 v%d, v%d, v%d" % (vT+2, vT+2, vT+1))
        a("v_lshlrev_b32 v%d, 4, v%d" % (vT+2, vT+2))
        a("v_lshl_add_u32 v%d, v%d, 8, v%d" % (vKr+ks, vT, vT+2))
    r_, c_, kr, dq = vT, vT+1, vT+2, vT+3
    a("v_lshrrev_b32 v%d, 2, v%d" % (r_, l16))
    a("v_and_b32 v%d, 3, v%d" % (c_, l16))
    a("v_lshrrev_b32 v%d, 1, v%d" % (kr, lhi))
    a("v_lshl_add_u32 v%d, v%d, 3, v%d" % (kr, kr, r_))
    a("v_and_b32 v%d, 1, v%d" % (vT+4, c_))
    a("v_lshrrev_b32 v%d, 1, v%d" % (vT+5, c_))
    a("v_lshl_or_b32 v%d, v%d, 1, v%d" % (dq, vT+4, vT+5))
    a("v_and_b32 v%d, 1, v%d" % (vT+4, lhi))
    a("v_lshl_add_u32 v%d, v%d, 2, v%d" % (dq, vT+4, dq))
    a("v_lshrrev_b32 v%d, 1, v%d" % (vT+4, dq))
    a("v_and_b32 v%d, 1, v%d" % (vT+5, dq))
    a("v_lshlrev_b32 v%d, 3, v%d" % (vT+5, vT+5))
    a("v_lshl_add_u32 v%d, v%d, 8, v%d" % (vT+5, kr, vT+5))
    a("v_lshlrev_b32 v%d, 2, v%d" % (vT+6, r_))
    for dt in range(4):
        a("v_add_u32 v%d, %d, v%d" % (vT+7, 4*dt, vT+4))
        a("v_xor_b32 v%d, v%d, v%d" % (vT+7, vT+7, vT+6))
        a("v_lshl_add_u32 v%d, v%d, 4, v%d" % (vTr+dt, vT+7, vT+5))
    a("s_lshl_b32 s%d, s%d, 5" % (sT0, sWv))
    a("v_add_u32 v%d, s%d, v%d" % (vT, sT0, l31))
    a("v_lshrrev_b32 v%d, 4, v%d" % (vT+1, vT))
    a("s_mul_i32 s%d, s%d, 7" % (sT1, sB))
    a("v_add_u32 v%d, s%d, v%d" % (vT+1, sT1, vT+1))
    a("v_lshlrev_b32 v%d, 17, v%d" % (vT+1, vT+1))
    a("v_and_b32 v%d, 15, v%d" % (vT+2, vT))
    a("v_lshl_add_u32 v%d, v%d, 4, v%d" % (vT+1, vT+2, vT+1))
    a("v_lshl_add_u32 v%d, v%d, 8, v%d" % (vT+1, g, vT+1))
    a("s_lshl_b32 s%d, s%d, 12" % (sT1, sH))
    a("v_add_u32 v%d, s%d, v%d" % (vT+1, sT1, vT+1))
    a("v_mov_b32 v%d, 0x7fff0000" % (vT+2))
    a("v_cmp_gt_u32 vcc, 112, v%d" % vT)
    a("s_nop 1")
    a("v_cndmask_b32 v%d, v%d, v%d, vcc" % (vOst, vT+2, vT+1))

    free = list(range(NSLOT))
    slot_of = {}
    issued = []
    def issue(item):
        s = free.pop(0)
        slot_of[item] = s
        kind, idx = item
        for i in range(4):
            a("s_add_u32 m0, s%d, %d" % (sW4k, s*SLOT + i*1024))
            if kind == 'K':
                a("s_mov_b32 s%d, %d" % (sT0, idx*SLOT))
                a("buffer_load_dwordx4 v%d, s[%d:%d], s%d offen lds" % (vKd+i, sK, sK+3, sT0))
            elif kind == 'V':
                a("s_mov_b32 s%d, %d" % (sT0, idx*SLOT + i*1024))
                a("buffer_load_dwordx4 v%d, s[%d:%d], s%d offen lds" % (vVd, sV, sV+3, sT0))
            elif kind == 'W':
                a("s_add_u32 s%d, s%d, %d" % (sT0, sWoff, idx*64*8192))
                a("buffer_load_dwordx4 v%d, s[%d:%d], s%d offen lds" % (vWd+i, sW, sW+3, sT0))
            elif kind == 'X':
                a("s_add_u32 s%d, s%d, %d" % (sT0, sXoff, idx*128))
                a("buffer_load_dwordx4 v%d, s[%d:%d], s%d offen lds" % (vXd+i, sX, sX+3, sT0))
        issued.append(item)
    queue = []
    for j in range(3): queue += [('W', j), ('X', j)]
    queue += [('K', i) for i in range(4)]
    for j in range(3, 10): queue += [('W', j), ('X', j)]
    queue += [('V', i) for i in range(4)] + [('K', i) for i in range(4, 8)] + [('V', i) for i in range(4, 8)]
    def fill():
        while free and queue:
            issue(queue.pop(0))
    pending_free = []
    def step_begin(items):
        last = max(issued.index(it) for it in items)
        n = min(63, 4 * (len(issued) - 1 - last))
        a("s_waitcnt vmcnt(%d) lgkmcnt(0)" % n)
        a("s_barrier")
        free.extend(pending_free); pending_free.clear()
        fill()
    def step_end(items):
        for it in items: pending_free.append(slot_of[it])

    fill()

    a.c("Q projection")
    def fb(n): return vFB + 4*n
    for j in range(10):
        items = [('W', j), ('X', j)]
        step_begin(items)
        wb, xb = slot_of[('W', j)]*SLOT, slot_of[('X', j)]*SLOT
        for dt in range(4): a("v_add_u32 v%d, %d, v%d" % (vT+dt, wb, vTr+dt))
        for kk in range(4): a("v_add_u32 v%d, %d, v%d" % (vT+4+kk, xb, vXr+kk))
        def rd(kk, buf):
            b0 = buf*5
            a("ds_read_b128 %s, v%d" % (vr(fb(b0+4), 4), vT+4+kk))
            for dt in range(4):
                a("ds_read_b64_tr_b16 %s, v%d offset:%d" % (vr(fb(b0+dt), 2), vT+dt, kk*4096))
                a("ds_read_b64_tr_b16 %s, v%d offset:%d" % (vr(fb(b0+dt)+2, 2), vT+dt, kk*4096+1024))
        rd(0, 0)
        for kk in range(4):
            buf = kk & 1
            if kk < 3:
                rd(kk+1, buf ^ 1)
                a("s_waitcnt lgkmcnt(9)")
            else:
                a("s_waitcnt lgkmcnt(0)")
            for dt in range(4):
                c = "0" if (j == 0 and kk == 0) else ar(aO+16*dt, 16)
                a("v_mfma_f32_32x32x16_bf16 %s, %s, %s, %s" % (ar(aO+16*dt, 16), vr(fb(buf*5+dt), 4), vr(fb(buf*5+4), 4), c))
        step_end(items)
    a.nop(12)
    for dt in range(4):
        for i in range(0, 16, 2):
            a("v_accvgpr_read_b32 v%d, a%d" % (vt0, aO+16*dt+i))
            a("v_accvgpr_read_b32 v%d, a%d" % (vt1, aO+16*dt+i+1))
            a("v_cvt_pk_bf16_f32 v%d, v%d, v%d" % (vQ + 8*dt + i//2, vt0, vt1))

    for half in range(2):
        a.c("S^T half %d" % half)
        for ci in range(4):
            item = ('K', 4*half+ci)
            step_begin([item])
            kb = slot_of[item]*SLOT
            for ks in range(8): a("v_add_u32 v%d, %d, v%d" % (vT+ks, kb, vKr+ks))
            seq = [(t, ks) for t in range(2) for ks in range(8)]
            NB = 8; PF = 4
            def rdk(n):
                t, ks = seq[n]
                a("ds_read_b128 %s, v%d offset:%d" % (vr(fb(n % NB), 4), vT+ks, t*8192))
            for n in range(PF): rdk(n)
            for n, (t, ks) in enumerate(seq):
                if n + PF < len(seq):
                    rdk(n+PF); a("s_waitcnt lgkmcnt(%d)" % PF)
                else:
                    a("s_waitcnt lgkmcnt(%d)" % (len(seq)-1-n))
                T = 2*ci + t
                c = "0" if ks == 0 else vr(vS+16*T, 16)
                a("v_mfma_f32_32x32x16_bf16 %s, %s, %s, %s" % (vr(vS+16*T, 16), vr(fb(n % NB), 4), vr(vQ+4*ks, 4), c))
            step_end([item])
        a.nop(12)
        a.c("softmax half %d" % half)
        pm = [vt0, vt1, vt2, vt3]
        for p in range(4):
            a("v_max3_f32 v%d, v%d, v%d, v%d" % (pm[p], vS+32*p, vS+32*p+1, vS+32*p+2))
        for i in range(3, 31, 2):
            for p in range(4):
                a("v_max3_f32 v%d, v%d, v%d, v%d" % (pm[p], pm[p], vS+32*p+i, vS+32*p+i+1))
        for p in range(4):
            a("v_max_f32 v%d, v%d, v%d" % (pm[p], pm[p], vS+32*p+31))
        a("v_max3_f32 v%d, v%d, v%d, v%d" % (vt0, vt0, vt1, vt2))
        a("v_max_f32 v%d, v%d, v%d" % (vt0, vt0, vt3))
        a("v_mov_b32 v%d, v%d" % (vt1, vt0))
        a("s_nop 1")
        a("v_permlane32_swap_b32 v%d, v%d" % (vt0, vt1))
        a("v_max_f32 v%d, v%d, v%d" % (vt0, vt0, vt1))
        if half == 0:
            a("v_mov_b32 v%d, v%d" % (vM, vt0))
            a("v_mov_b32 v%d, 0" % vLsum)
        else:
            a("v_max_f32 v%d, v%d, v%d" % (vt0, vt0, vM))
            a("v_sub_f32 v%d, v%d, v%d" % (vt1, vM, vt0))
            a("v_mul_f32 v%d, s%d, v%d" % (vt1, sC, vt1))
            a("v_exp_f32 v%d, v%d" % (vF, vt1))
            a("v_mov_b32 v%d, v%d" % (vM, vt0))
            a("s_nop 0")
            a("v_mul_f32 v%d, v%d, v%d" % (vLsum, vLsum, vF))
            for i in range(64):
                a("v_accvgpr_read_b32 v%d, a%d" % (vt1 if i % 2 == 0 else vt2, aO+i))
                a("v_mul_f32 v%d, v%d, v%d" % (vt1 if i % 2 == 0 else vt2, vt1 if i % 2 == 0 else vt2, vF))
                a("v_accvgpr_write_b32 a%d, v%d" % (aO+i, vt1 if i % 2 == 0 else vt2))
        a("v_mul_f32 v%d, s%d, v%d" % (vMC, sC, vM))
        ls = [vLsum, vt3]
        a("v_mov_b32 v%d, 0" % vt3)
        for i in range(128):
            a("v_fma_f32 v%d, v%d, s%d, -v%d" % (vS+i, vS+i, sC, vMC))
        for i in range(128):
            a("v_exp_f32 v%d, v%d" % (vS+i, vS+i))
        a("s_nop 0")
        for i in range(128):
            a("v_add_f32 v%d, v%d, v%d" % (ls[i % 2], ls[i % 2], vS+i))
        a("v_add_f32 v%d, v%d, v%d" % (vLsum, vLsum, vt3))
        for T in range(8):
            for i in range(8):
                a("v_cvt_pk_bf16_f32 v%d, v%d, v%d" % (vS+16*T+i, vS+16*T+2*i, vS+16*T+2*i+1))
        a("s_nop 1")
        a.c("PV half %d" % half)
        for ci in range(4):
            item = ('V', 4*half+ci)
            step_begin([item])
            vb = slot_of[item]*SLOT
            for dt in range(4): a("v_add_u32 v%d, %d, v%d" % (vT+dt, vb, vTr+dt))
            seq = [(k4, dt) for k4 in range(4) for dt in range(4)]
            NB = 8; PF = 4
            def rdv(n):
                k4, dt = seq[n]
                a("ds_read_b64_tr_b16 %s, v%d offset:%d" % (vr(fb(n % NB), 2), vT+dt, k4*4096))
                a("ds_read_b64_tr_b16 %s, v%d offset:%d" % (vr(fb(n % NB)+2, 2), vT+dt, k4*4096+1024))
            for n in range(PF): rdv(n)
            for n, (k4, dt) in enumerate(seq):
                if n + PF < len(seq):
                    rdv(n+PF); a("s_waitcnt lgkmcnt(%d)" % (2*PF))
                else:
                    a("s_waitcnt lgkmcnt(%d)" % (2*(len(seq)-1-n)))
                kst = 4*ci + k4
                T, jj = kst // 2, kst % 2
                c = "0" if (half == 0 and ci == 0 and k4 == 0) else ar(aO+16*dt, 16)
                a("v_mfma_f32_32x32x16_bf16 %s, %s, %s, %s" % (ar(aO+16*dt, 16), vr(fb(n % NB), 4), vr(vS+16*T+4*jj, 4), c))
            step_end([item])
        a.nop(12)
    a("v_mov_b32 v%d, v%d" % (vt1, vLsum))
    a("s_nop 1")
    a("v_permlane32_swap_b32 v%d, v%d" % (vLsum, vt1))
    a("v_add_f32 v%d, v%d, v%d" % (vLsum, vLsum, vt1))
    a("v_rcp_f32 v%d, v%d" % (vF, vLsum))
    a("s_nop 0")
    for dt in range(4):
        for jj in range(2):
            base = vS + 16*dt + 8*jj
            for i in range(8):
                a("v_accvgpr_read_b32 v%d, a%d" % (base+i, aO+16*dt+8*jj+i))
            for i in range(8):
                a("v_mul_f32 v%d, v%d, v%d" % (base+i, base+i, vF))
            for i in range(4):
                a("v_cvt_pk_bf16_f32 v%d, v%d, v%d" % (base+i, base+2*i, base+2*i+1))
            a("buffer_store_dwordx4 %s, v%d, s[%d:%d], 0 offen offset:%d" % (vr(base, 4), vOst, sO, sO+3, dt*1024+jj*512))
    a("s_waitcnt vmcnt(0) lgkmcnt(0)")
    a("s_barrier")
    sJob = 43
    a("s_mov_b32 s%d, s%d" % (sJob, sWv))
    a.lab("k1_wojob")
    a("s_and_b32 s%d, s2, 1" % sT0)
    a("s_mul_i32 s%d, s%d, 5" % (sT0, sT0))
    a("s_add_u32 s%d, s%d, s%d" % (sT0, sT0, sJob))
    a("s_lshr_b32 s%d, s2, 1" % sT1)
    a("v_lshrrev_b32 v%d, 3, v%d" % (vt0, vL))
    a("s_mov_b32 s%d, 1280" % sT2)
    a("v_mul_lo_u32 v%d, v%d, s%d" % (vt0, vt0, sT2))
    a("v_and_b32 v%d, 7, v%d" % (vt1, vL))
    a("v_lshl_add_u32 v%d, v%d, 4, v%d" % (vt0, vt1, vt0))
    a("s_mul_i32 s%d, s%d, %d" % (sT2, sT1, 32*1280))
    a("s_lshl_b32 s%d, s%d, 7" % (sT3, sT0))
    a("s_add_u32 s%d, s%d, s%d" % (sT2, sT2, sT3))
    for i in range(4):
        a("s_add_u32 m0, s%d, %d" % (sW4k, i*1024))
        a("s_add_u32 s%d, s%d, %d" % (sT3, sT2, i*8*1280))
        a("buffer_load_dwordx4 v%d, s[%d:%d], s%d offen lds" % (vt0, sWO, sWO+3, sT3))
    a("v_lshrrev_b32 v%d, 4, v%d" % (vt1, vL))
    a("v_and_b32 v%d, 15, v%d" % (vt2, vL))
    a("v_lshrrev_b32 v%d, 2, v%d" % (vt3, vt2))
    a("v_lshl_add_u32 v%d, v%d, 3, v%d" % (vt1, vt1, vt3))
    a("v_and_b32 v%d, 3, v%d" % (vt2, vt2))
    a("v_lshlrev_b32 v%d, 3, v%d" % (vt2, vt2))
    a("v_lshl_add_u32 v%d, v%d, 7, v%d" % (vt1, vt1, vt2))
    a("v_add_u32 v%d, s%d, v%d" % (vt1, sW4k, vt1))
    a("s_lshl_b32 s%d, s%d, 19" % (sT0, sT0))
    a("s_lshl_b32 s%d, s%d, 10" % (sT1, sT1))
    a("s_add_u32 s%d, s%d, s%d" % (sT0, sT0, sT1))
    a("s_add_u32 s%d, s%d, %d" % (sT0, sT0, OFF_WOT))
    a("v_lshlrev_b32 v%d, 4, v%d" % (vt2, vL))
    a("s_waitcnt vmcnt(0)")
    for nt in range(4):
        a("ds_read_b64_tr_b16 %s, v%d offset:%d" % (vr(vS+4*nt, 2), vt1, nt*32))
        a("ds_read_b64_tr_b16 %s, v%d offset:%d" % (vr(vS+4*nt+2, 2), vt1, nt*32+512))
    a("s_waitcnt lgkmcnt(0)")
    for nt in range(4):
        a("s_add_u32 s%d, s%d, %d" % (sT1, sT0, nt*131072))
        a("buffer_store_dwordx4 %s, v%d, s[%d:%d], s%d offen" % (vr(vS+4*nt, 4), vt2, sO, sO+3, sT1))
    a("s_add_u32 s%d, s%d, 4" % (sJob, sJob))
    a("s_waitcnt vmcnt(0)")
    a("s_cmp_lt_u32 s%d, 5" % sJob)
    a("s_cbranch_scc1 k1_wojob")
    a.lab("k1_done")
    a("s_endpgm")

def gen_k2(a):
    sWS, sP = 8, 12
    sB, sNB, sKS, sWv = 16, 17, 18, 19
    sT0, sT1 = 20, 21
    sA = 24
    sBq = 32
    v0off, v1off = 1, 2
    vF = 8
    DEPTH = 4
    a.lab("k2_kernel")
    a("s_cmp_ge_u32 s2, 256")
    a("s_cbranch_scc1 k2_done")
    a("s_load_dwordx2 s[4:5], s[0:1], 56")
    a("v_and_b32 v3, 63, v0")
    a("v_lshrrev_b32 v4, 6, v0")
    a("s_nop 0")
    a("v_readfirstlane_b32 s%d, v4" % sWv)
    a("s_and_b32 s%d, s2, 3" % sKS)
    a("s_lshr_b32 s%d, s2, 2" % sT0); a("s_and_b32 s%d, s%d, 1" % (sT0, sT0)); a("s_lshl_b32 s%d, s%d, 2" % (sT0, sT0))
    a("s_lshr_b32 s%d, s2, 3" % sT1); a("s_and_b32 s%d, s%d, 3" % (sB, sT1)); a("s_add_u32 s%d, s%d, s%d" % (sB, sB, sT0))
    a("s_lshr_b32 s%d, s2, 5" % sNB)
    a("v_lshlrev_b32 v%d, 4, v3" % v0off)
    a("v_add_u32 v%d, 4096, v%d" % (v1off, v0off))
    a("s_waitcnt lgkmcnt(0)")
    a("s_mov_b32 s%d, s4" % sWS); a("s_and_b32 s%d, s5, 0xffff" % (sWS+1)); a("s_mov_b32 s%d, %d" % (sWS+2, OFF_PART)); a("s_mov_b32 s%d, 0x20000" % (sWS+3))
    a("s_add_u32 s%d, s4, %d" % (sP, OFF_PART)); a("s_addc_u32 s%d, s5, 0" % (sP+1)); a("s_and_b32 s%d, s%d, 0xffff" % (sP+1, sP+1))
    a("s_mov_b32 s%d, %d" % (sP+2, 4*64*35*1024)); a("s_mov_b32 s%d, 0x20000" % (sP+3))
    a("s_lshl_b32 s%d, s%d, 5" % (sT0, sKS)); a("s_lshl_b32 s%d, s%d, 3" % (sT1, sWv)); a("s_add_u32 s%d, s%d, s%d" % (sT0, sT0, sT1))
    a("s_lshl_b32 s%d, s%d, 10" % (sT0, sT0))
    a("s_mul_i32 s%d, s%d, %d" % (sT1, sNB, 5*131072)); a("s_add_u32 s%d, s%d, s%d" % (sT1, sT1, sT0)); a("s_add_u32 s%d, s%d, %d" % (sT1, sT1, OFF_WOT))
    for n in range(5): a("s_add_u32 s%d, s%d, %d" % (sA+n, sT1, n*131072))
    a("s_mul_i32 s%d, s%d, %d" % (sT1, sB, 7*131072)); a("s_add_u32 s%d, s%d, s%d" % (sT1, sT1, sT0))
    for r in range(7): a("s_add_u32 s%d, s%d, %d" % (sBq+r, sT1, r*131072))
    def ld(k):
        buf = k % DEPTH
        vo = v0off if k < 4 else v1off
        for f in range(12):
            sb = sA+f if f < 5 else sBq+f-5
            a("buffer_load_dwordx4 %s, v%d, s[%d:%d], s%d offen offset:%d" % (vr(vF+(buf*12+f)*4, 4), vo, sWS, sWS+3, sb, (k % 4)*1024))
    for k in range(DEPTH): ld(k)
    for k in range(8):
        buf = k % DEPTH
        rem = min(8, k+DEPTH) - (k+1)
        a("s_waitcnt vmcnt(%d)" % (12*rem))
        for n in range(5):
            for r in range(7):
                t = n*7 + r
                c = "0" if k == 0 else ar(4*t, 4)
                a("v_mfma_f32_16x16x32_bf16 %s, %s, %s, %s" % (ar(4*t, 4), vr(vF+(buf*12+n)*4, 4), vr(vF+(buf*12+5+r)*4, 4), c))
        if k + DEPTH < 8: ld(k+DEPTH)
    a.nop(10)
    a("s_mul_i32 s%d, s%d, %d" % (sT0, sWv, 35*1024))
    a("v_add_u32 v4, s%d, v%d" % (sT0, v0off))
    for t in range(35):
        a("ds_write_b128 v4, %s offset:%d" % (ar(4*t, 4), t*1024))
    a("s_waitcnt lgkmcnt(0)")
    a("s_barrier")
    a("s_lshl_b32 s%d, s%d, 6" % (sT0, sKS)); a("s_lshl_b32 s%d, s%d, 3" % (sT1, sB)); a("s_add_u32 s%d, s%d, s%d" % (sT0, sT0, sT1)); a("s_add_u32 s%d, s%d, s%d" % (sT0, sT0, sNB))
    a("s_mul_i32 s%d, s%d, %d" % (sT0, sT0, 35*1024))
    a("s_lshl_b32 s%d, s%d, 10" % (sT1, sWv))
    a("s_add_u32 s%d, s%d, s%d" % (sT0, sT0, sT1))
    a("v_add_u32 v4, s%d, v%d" % (sT1, v0off))
    a("v_add_u32 v5, %d, v4" % (35*1024))
    a("v_add_u32 v6, %d, v4" % (2*35*1024))
    a("v_add_u32 v7, %d, v4" % (3*35*1024))
    for i in range(9):
        if i == 8:
            a("s_cmp_ge_u32 s%d, 3" % sWv)
            a("s_cbranch_scc1 k2_done")
        o = i*4096
        a("ds_read_b128 v[8:11], v4 offset:%d" % o)
        a("ds_read_b128 v[12:15], v5 offset:%d" % o)
        a("ds_read_b128 v[16:19], v6 offset:%d" % o)
        a("ds_read_b128 v[20:23], v7 offset:%d" % o)
        a("s_waitcnt lgkmcnt(0)")
        for e in range(4):
            a("v_add_f32 v%d, v%d, v%d" % (8+e, 8+e, 12+e))
            a("v_add_f32 v%d, v%d, v%d" % (16+e, 16+e, 20+e))
        for e in range(4):
            a("v_add_f32 v%d, v%d, v%d" % (24+e, 8+e, 16+e))
        a("s_add_u32 s%d, s%d, %d" % (sT1, sT0, o))
        a("buffer_store_dwordx4 v[24:27], v%d, s[%d:%d], s%d offen" % (v0off, sP, sP+3, sT1))
        a("s_nop 1")
    a.lab("k2_done")
    a("s_endpgm")

def gen_k3(a):
    a.lab("k3_kernel")
    a("s_cmp_ge_u32 s2, 560")
    a("s_cbranch_scc1 k3_done")
    a("s_load_dwordx2 s[4:5], s[0:1], 56")
    a("s_load_dwordx2 s[6:7], s[0:1], 40")
    a("v_and_b32 v3, 63, v0")
    a("v_lshrrev_b32 v4, 6, v0")
    a("s_nop 0")
    a("v_readfirstlane_b32 s16, v4")
    a("s_lshl_b32 s17, s2, 2")
    a("s_add_u32 s17, s17, s16")
    a("s_mul_i32 s18, s17, 29960"); a("s_lshr_b32 s18, s18, 20")
    a("s_mul_i32 s19, s18, 35"); a("s_sub_u32 s19, s17, s19")
    a("s_mul_i32 s20, s19, 37"); a("s_lshr_b32 s20, s20, 8")
    a("s_mul_i32 s21, s20, 7"); a("s_sub_u32 s21, s19, s21")
    a("s_lshr_b32 s22, s18, 3")
    a("s_and_b32 s23, s18, 7")
    a("s_waitcnt lgkmcnt(0)")
    a("s_add_u32 s8, s4, %d" % OFF_PART); a("s_addc_u32 s9, s5, 0"); a("s_and_b32 s9, s9, 0xffff")
    a("s_mov_b32 s10, %d" % (4*64*35*1024)); a("s_mov_b32 s11, 0x20000")
    a("s_mov_b32 s12, s6"); a("s_and_b32 s13, s7, 0xffff"); a("s_mov_b32 s14, %d" % (896*640*2)); a("s_mov_b32 s15, 0x20000")
    a("v_lshlrev_b32 v1, 4, v3")
    a("s_lshl_b32 s24, s17, 10")
    for ks in range(4):
        a("s_add_u32 s25, s24, %d" % (ks*64*35*1024))
        a("buffer_load_dwordx4 v[%d:%d], v1, s[8:11], s25 offen" % (8+4*ks, 11+4*ks))
    a("s_mul_i32 s26, s22, 112"); a("s_lshl_b32 s27, s21, 4"); a("s_add_u32 s26, s26, s27")
    a("s_mul_i32 s27, s23, 80"); a("s_lshl_b32 s28, s20, 4"); a("s_add_u32 s27, s27, s28")
    a("v_and_b32 v4, 15, v3")
    a("v_add_u32 v4, s26, v4")
    a("s_mov_b32 s28, 1280")
    a("v_mul_lo_u32 v4, v4, s28")
    a("v_lshrrev_b32 v5, 4, v3")
    a("v_lshlrev_b32 v5, 3, v5")
    a("v_add_u32 v4, v4, v5")
    a("s_lshl_b32 s27, s27, 1")
    a("v_add_u32 v4, s27, v4")
    a("s_waitcnt vmcnt(0)")
    for e in range(4):
        a("v_add_f32 v%d, v%d, v%d" % (8+e, 8+e, 12+e))
        a("v_add_f32 v%d, v%d, v%d" % (16+e, 16+e, 20+e))
    for e in range(4):
        a("v_add_f32 v%d, v%d, v%d" % (8+e, 8+e, 16+e))
    a("v_cvt_pk_bf16_f32 v24, v8, v9")
    a("v_cvt_pk_bf16_f32 v25, v10, v11")
    a("buffer_store_dwordx2 v[24:25], v4, s[12:15], 0 offen")
    a.lab("k3_done")
    a("s_endpgm")

HDR = """; Kernarg layout (64 bytes): x, k_cache, v_cache, wq, wo, d_out, d_debug, d_ws
; @launch kernel=k1_kernel grid=(256,1,1) block=(256,1,1) lds=163840
; @launch kernel=k2_kernel grid=(256,1,1) block=(256,1,1) lds=143360
; @launch kernel=k3_kernel grid=(560,1,1) block=(256,1,1) lds=0
.amdgcn_target "amdgcn-amd-amdhsa--gfx950"
.text
"""
def kd(name, vgpr, sgpr, acc):
    return """.amdhsa_kernel %s
  .amdhsa_next_free_vgpr %d
  .amdhsa_next_free_sgpr %d
  .amdhsa_accum_offset %d
  .amdhsa_group_segment_fixed_size 0
  .amdhsa_kernarg_size 64
  .amdhsa_user_sgpr_count 2
  .amdhsa_user_sgpr_kernarg_segment_ptr 1
  .amdhsa_system_sgpr_workgroup_id_x 1
.end_amdhsa_kernel
""" % (name, vgpr, sgpr, acc)

def main():
    out = HDR
    for name, fn in (("k1_kernel", gen_k1), ("k2_kernel", gen_k2), ("k3_kernel", gen_k3)):
        a = A(); fn(a)
        out += ".globl %s\n.p2align 8\n.type %s,@function\n" % (name, name) + a.text()
    import struct, math
    cbits = struct.unpack("<I", struct.pack("<f", 128**-0.5 * math.log2(math.e)))[0]
    out = out.replace("0x3e0293ee", "0x%08x" % cbits)
    out += '.section .rodata,"a"\n.p2align 6\n'
    out += kd("k1_kernel", 320, 102, 256)
    out += ".p2align 6\n" + kd("k2_kernel", 8+192+140, 102, 200)
    out += ".p2align 6\n" + kd("k3_kernel", 32, 102, 32)
    open(sys.argv[1] if len(sys.argv) > 1 else "standalone__gqa_block_cached__near_ridge.s", "w").write(out)

main()
```

```python
import sys

OFF_O    = 0
OFF_WOT  = 8 << 20
OFF_PART = 16 << 20
WS_BYTES = 268435456

class A:
    def __init__(s): s.l = []
    mute = False
    def __call__(s, x):
        if s.mute and not x.startswith(("s_waitcnt","s_barrier","buffer_load","s_add_u32","s_mov_b32 s","s_mem","v_mov_b32 v46","v_mov_b32 v45","s_lshl_b32 s62","s_mov_b64","buffer_store_dword v46")): return
        s.l.append("    " + x)
    def lab(s, x): s.l.append(x + ":")
    def c(s, x): s.l.append("    ; " + x)
    def nop(s, n):
        while n > 0:
            k = min(n, 16); s("s_nop %d" % (k - 1)); n -= k
    def text(s): return "\n".join(s.l) + "\n"

def vr(b, n): return "v[%d:%d]" % (b, b + n - 1)
def ar(b, n): return "a[%d:%d]" % (b, b + n - 1)

STAMPS = len(sys.argv) > 2 and "stamp" in sys.argv[2:]
OPT = set(sys.argv[2:])
OFF_DBG = 32 << 20
def gen_k1(a):
    nst = [0]
    def stamp(real=False):
        if not STAMPS: return
        a("s_memrealtime s[60:61]" if real else "s_memtime s[60:61]")
        a("s_waitcnt lgkmcnt(0)")
        a("v_mov_b32 v%d, s60" % 46)
        a("s_lshl_b32 s62, s2, 8")
        a("s_add_u32 s62, s62, %d" % (nst[0]*4))
        a("s_mov_b64 s[64:65], exec")
        a("s_mov_b64 exec, 1")
        a("v_mov_b32 v45, 0")
        a("buffer_store_dword v46, v45, s[68:71], s62 offen")
        a("s_mov_b64 exec, s[64:65]")
        nst[0] += 1
    SLOT = 16384
    NSLOT = 10
    sX, sK, sV, sW, sO, sWO = 8, 12, 16, 20, 24, 28
    sWv = 32
    sW4k = 33
    sB, sH = 34, 35
    sT0, sT1, sT2, sT3 = 36, 37, 38, 39
    sXoff = 40
    sC = 41
    sWoff = 42
    sRot = 52
    sJl = 53
    vTid = 0
    vL = 1
    vKd = 2
    vVd = 6
    vWd = 7
    vXd = 11
    vXr = 15
    vTr = 19
    vKr = 23
    vT = 31
    vM, vLsum, vMC, vF = 39, 40, 41, 42
    vt0, vt1, vt2, vt3 = 43, 44, 45, 46
    vOst = 47
    vQ = 48
    vFB = 80
    vS = 128
    aO = 0

    a.lab("k1_kernel")
    a("s_cmp_ge_u32 s2, 256")
    a("s_cbranch_scc1 k1_done")
    a("s_load_dwordx4 s[4:7], s[0:1], 0")
    a("s_load_dwordx4 s[44:47], s[0:1], 16")
    a("s_load_dwordx2 s[48:49], s[0:1], 32")
    a("s_load_dwordx2 s[50:51], s[0:1], 56")
    a("v_and_b32 v%d, 63, v0" % vL)
    a("v_lshrrev_b32 v%d, 6, v0" % vt0)
    a("s_nop 0")
    a("v_readfirstlane_b32 s%d, v%d" % (sWv, vt0))
    a("s_lshr_b32 s%d, s2, 5" % sB)
    a("s_and_b32 s%d, s2, 7" % sT0)
    a("s_lshl_b32 s%d, s%d, 2" % (sT0, sT0))
    a("s_lshr_b32 s%d, s2, 3" % sT1)
    a("s_and_b32 s%d, s%d, 3" % (sT1, sT1))
    a("s_add_u32 s%d, s%d, s%d" % (sH, sT0, sT1))
    if "mapB" in OPT:
        a("s_and_b32 s%d, s2, 7" % sB)
        a("s_lshr_b32 s%d, s2, 3" % sH)
    a("s_lshl_b32 s%d, s%d, 12" % (sW4k, sWv))
    a("s_mov_b32 s%d, 0x3e0293ee" % sC)
    a("s_waitcnt lgkmcnt(0)")
    a("s_mov_b32 s%d, s4" % sX); a("s_and_b32 s%d, s5, 0xffff" % (sX+1)); a("s_mov_b32 s%d, %d" % (sX+2, 8*112*640*2)); a("s_mov_b32 s%d, 0x20000" % (sX+3))
    a("s_lshl_b32 s%d, s%d, 5" % (sT0, sB)); a("s_add_u32 s%d, s%d, s%d" % (sT0, sT0, sH))
    a("s_lshl_b32 s%d, s%d, 17" % (sT1, sT0))
    a("s_add_u32 s%d, s6, s%d" % (sK, sT1)); a("s_addc_u32 s%d, s7, 0" % (sK+1)); a("s_and_b32 s%d, s%d, 0xffff" % (sK+1, sK+1))
    a("s_mov_b32 s%d, 131072" % (sK+2)); a("s_mov_b32 s%d, 0x20000" % (sK+3))
    a("s_add_u32 s%d, s44, s%d" % (sV, sT1)); a("s_addc_u32 s%d, s45, 0" % (sV+1)); a("s_and_b32 s%d, s%d, 0xffff" % (sV+1, sV+1))
    a("s_mov_b32 s%d, 131072" % (sV+2)); a("s_mov_b32 s%d, 0x20000" % (sV+3))
    a("s_mov_b32 s%d, s46" % sW); a("s_and_b32 s%d, s47, 0xffff" % (sW+1)); a("s_mov_b32 s%d, %d" % (sW+2, 640*4096*2)); a("s_mov_b32 s%d, 0x20000" % (sW+3))
    a("s_mov_b32 s%d, s50" % sO); a("s_and_b32 s%d, s51, 0xffff" % (sO+1)); a("s_mov_b32 s%d, %d" % (sO+2, OFF_PART)); a("s_mov_b32 s%d, 0x20000" % (sO+3))
    a("s_mov_b32 s%d, s48" % sWO); a("s_and_b32 s%d, s49, 0xffff" % (sWO+1)); a("s_mov_b32 s%d, %d" % (sWO+2, 4096*640*2)); a("s_mov_b32 s%d, 0x20000" % (sWO+3))
    a("s_add_u32 s68, s50, %d" % OFF_DBG); a("s_addc_u32 s69, s51, 0"); a("s_and_b32 s69, s69, 0xffff"); a("s_mov_b32 s70, 65536"); a("s_mov_b32 s71, 0x20000")
    a("s_mul_i32 s%d, s%d, %d" % (sXoff, sB, 112*1280))
    a("s_lshl_b32 s%d, s%d, 8" % (sWoff, sH))
    a("s_and_b32 s%d, s%d, 3" % (sT0, sH)); a("s_mul_i32 s%d, s%d, 3" % (sT0, sT0)); a("s_add_u32 s%d, s%d, s%d" % (sRot, sT0, sB))
    a("s_cmp_ge_u32 s%d, 10" % sRot); a("s_cselect_b32 s%d, 10, 0" % sT0); a("s_sub_u32 s%d, s%d, s%d" % (sRot, sRot, sT0))
    if "norot" in OPT: a("s_mov_b32 s%d, 0" % sRot)
    if "fakeW" in OPT: a("s_mul_i32 s%d, s%d, %d" % (sWoff, sH, 163840))

    l16 = vt0; lhi = vt1
    a("v_and_b32 v%d, 15, v%d" % (l16, vL))
    a("v_lshrrev_b32 v%d, 4, v%d" % (lhi, vL))
    for i in range(4):
        a("v_add_u32 v%d, %d, v%d" % (vt2, 4*i, lhi))
        a("v_xor_b32 v%d, v%d, v%d" % (vt2, vt2, l16))
        a("v_lshlrev_b32 v%d, 4, v%d" % (vt2, vt2))
        a("v_lshl_add_u32 v%d, v%d, 8, v%d" % (vt2, lhi, vt2))
        a("v_add_u32 v%d, %d, v%d" % (vKd+i, 1024*i, vt2))
        a("v_add_u32 v%d, s%d, v%d" % (vKd+i, sW4k, vKd+i))
    a("v_lshlrev_b32 v%d, 2, v%d" % (vt2, lhi))
    a("v_xor_b32 v%d, v%d, v%d" % (vt2, vt2, l16))
    a("v_lshlrev_b32 v%d, 4, v%d" % (vt2, vt2))
    a("v_lshl_add_u32 v%d, v%d, 8, v%d" % (vVd, lhi, vt2))
    a("v_add_u32 v%d, s%d, v%d" % (vVd, sW4k, vVd))
    a("s_lshl_b32 s%d, s%d, 17" % (sT0, sWv))
    if "fakeW" in OPT: a("s_lshl_b32 s%d, s%d, 12" % (sT0, sWv))
    for i in range(4):
        a("v_add_u32 v%d, %d, v%d" % (vt3, 4*i, lhi))
        a("v_lshl_add_u32 v%d, v%d, %d, v%d" % (vWd+i, vt3, 8 if "fakeW" in OPT else 13, vt2))
        a("v_add_u32 v%d, s%d, v%d" % (vWd+i, sT0, vWd+i))
    a("v_and_b32 v%d, 7, v%d" % (vt2, vL))
    a("v_lshrrev_b32 v%d, 3, v%d" % (vt3, vL))
    a("s_mul_i32 s%d, s%d, %d" % (sT0, sWv, 32*1280))
    a("s_mov_b32 s%d, 1280" % sT1)
    for i in range(4):
        a("v_add_u32 v%d, %d, v%d" % (vT, 4*i, lhi))
        a("v_and_b32 v%d, 7, v%d" % (vT, vT))
        a("v_xor_b32 v%d, v%d, v%d" % (vT, vT, vt2))
        a("v_lshlrev_b32 v%d, 4, v%d" % (vT, vT))
        a("v_add_u32 v%d, %d, v%d" % (vT+1, 8*i, vt3))
        a("v_mul_lo_u32 v%d, v%d, s%d" % (vT+1, vT+1, sT1))
        a("v_add_u32 v%d, v%d, v%d" % (vXd+i, vT, vT+1))
        a("v_add_u32 v%d, s%d, v%d" % (vXd+i, sT0, vXd+i))
        a("v_mov_b32 v%d, 0x7fff0000" % (vT+2))
        a("v_cmp_gt_u32 vcc, %d, v%d" % (112*1280, vXd+i))
        a("s_nop 1")
        a("v_cndmask_b32 v%d, v%d, v%d, vcc" % (vXd+i, vT+2, vXd+i))
    l31 = vt2; g = vt3
    a("v_and_b32 v%d, 31, v%d" % (l31, vL))
    a("v_lshrrev_b32 v%d, 5, v%d" % (g, vL))
    a("v_lshrrev_b32 v%d, 1, v%d" % (vT, l31))
    a("v_and_b32 v%d, 7, v%d" % (vT, vT))
    a("v_lshlrev_b32 v%d, 7, v%d" % (vT+1, l31))
    a("v_add_u32 v%d, s%d, v%d" % (vT+1, sW4k, vT+1))
    for kk in range(4):
        a("v_add_u32 v%d, %d, v%d" % (vT+2, 2*kk, g))
        a("v_xor_b32 v%d, v%d, v%d" % (vT+2, vT+2, vT))
        a("v_lshl_add_u32 v%d, v%d, 4, v%d" % (vXr+kk, vT+2, vT+1))
    def swap23(dst, src, t1, t2):
        a("v_and_b32 v%d, 0x13, v%d" % (dst, src))
        a("v_and_b32 v%d, 4, v%d" % (t1, src))
        a("v_and_b32 v%d, 8, v%d" % (t2, src))
        a("v_lshlrev_b32 v%d, 1, v%d" % (t1, t1))
        a("v_lshrrev_b32 v%d, 1, v%d" % (t2, t2))
        a("v_or3_b32 v%d, v%d, v%d, v%d" % (dst, dst, t1, t2))
    swap23(vT, l31, vT+1, vT+2)
    a("v_and_b32 v%d, 15, v%d" % (vT+1, vT))
    for ks in range(8):
        a("v_add_u32 v%d, %d, v%d" % (vT+2, 2*ks, g))
        a("v_xor_b32 v%d, v%d, v%d" % (vT+2, vT+2, vT+1))
        a("v_lshlrev_b32 v%d, 4, v%d" % (vT+2, vT+2))
        a("v_lshl_add_u32 v%d, v%d, 8, v%d" % (vKr+ks, vT, vT+2))
    r_, c_, kr, dq = vT, vT+1, vT+2, vT+3
    a("v_lshrrev_b32 v%d, 2, v%d" % (r_, l16))
    a("v_and_b32 v%d, 3, v%d" % (c_, l16))
    a("v_lshrrev_b32 v%d, 1, v%d" % (kr, lhi))
    a("v_lshl_add_u32 v%d, v%d, 3, v%d" % (kr, kr, r_))
    a("v_and_b32 v%d, 1, v%d" % (vT+4, c_))
    a("v_lshrrev_b32 v%d, 1, v%d" % (vT+5, c_))
    a("v_lshl_or_b32 v%d, v%d, 1, v%d" % (dq, vT+4, vT+5))
    a("v_and_b32 v%d, 1, v%d" % (vT+4, lhi))
    a("v_lshl_add_u32 v%d, v%d, 2, v%d" % (dq, vT+4, dq))
    a("v_lshrrev_b32 v%d, 1, v%d" % (vT+4, dq))
    a("v_and_b32 v%d, 1, v%d" % (vT+5, dq))
    a("v_lshlrev_b32 v%d, 3, v%d" % (vT+5, vT+5))
    a("v_lshl_add_u32 v%d, v%d, 8, v%d" % (vT+5, kr, vT+5))
    a("v_lshlrev_b32 v%d, 2, v%d" % (vT+6, r_))
    for dt in range(4):
        a("v_add_u32 v%d, %d, v%d" % (vT+7, 4*dt, vT+4))
        a("v_xor_b32 v%d, v%d, v%d" % (vT+7, vT+7, vT+6))
        a("v_lshl_add_u32 v%d, v%d, 4, v%d" % (vTr+dt, vT+7, vT+5))
    a("s_lshl_b32 s%d, s%d, 5" % (sT0, sWv))
    a("v_add_u32 v%d, s%d, v%d" % (vT, sT0, l31))
    a("v_lshrrev_b32 v%d, 4, v%d" % (vT+1, vT))
    a("s_mul_i32 s%d, s%d, 7" % (sT1, sB))
    a("v_add_u32 v%d, s%d, v%d" % (vT+1, sT1, vT+1))
    a("v_lshlrev_b32 v%d, 17, v%d" % (vT+1, vT+1))
    a("v_and_b32 v%d, 15, v%d" % (vT+2, vT))
    a("v_lshl_add_u32 v%d, v%d, 4, v%d" % (vT+1, vT+2, vT+1))
    a("v_lshl_add_u32 v%d, v%d, 8, v%d" % (vT+1, g, vT+1))
    a("s_lshl_b32 s%d, s%d, 12" % (sT1, sH))
    a("v_add_u32 v%d, s%d, v%d" % (vT+1, sT1, vT+1))
    a("v_mov_b32 v%d, 0x7fff0000" % (vT+2))
    a("v_cmp_gt_u32 vcc, 112, v%d" % vT)
    a("s_nop 1")
    a("v_cndmask_b32 v%d, v%d, v%d, vcc" % (vOst, vT+2, vT+1))

    free = list(range(NSLOT))
    slot_of = {}
    issued = []
    cnts = []
    def issue(item):
        s = free.pop(0)
        slot_of[item] = s
        kind, idx = item
        for i in range(4):
            a("s_add_u32 m0, s%d, %d" % (sW4k, s*SLOT + i*1024))
            if kind == 'K':
                a("s_mov_b32 s%d, %d" % (sT0, idx*SLOT))
                a("buffer_load_dwordx4 v%d, s[%d:%d], s%d offen nt lds" % (vKd+i, sK, sK+3, sT0))
            elif kind == 'V':
                a("s_mov_b32 s%d, %d" % (sT0, idx*SLOT + i*1024))
                a("buffer_load_dwordx4 v%d, s[%d:%d], s%d offen nt lds" % (vVd, sV, sV+3, sT0))
            elif kind == 'W':
                if i == 0:
                    a("s_lshl_b32 s%d, s%d, 19" % (sT1, sRot)); a("s_add_u32 s%d, s%d, s%d" % (sT1, sT1, sWoff))
                a("s_mov_b32 s%d, s%d" % (sT0, sT1))
                a("buffer_load_dwordx4 v%d, s[%d:%d], s%d offen %s lds" % (vWd+i, sW, sW+3, sT0, "nt" if "ntW" in OPT else ""))
            elif kind == 'X':
                if i == 0:
                    a("s_lshl_b32 s%d, s%d, 7" % (sT1, sRot)); a("s_add_u32 s%d, s%d, s%d" % (sT1, sT1, sXoff))
                a("s_mov_b32 s%d, s%d" % (sT0, sT1))
                a("buffer_load_dwordx4 v%d, s[%d:%d], s%d offen %s lds" % (vXd+i, sX, sX+3, sT0, "nt" if "ntW" in OPT else ""))
        if kind == 'X':
            a("s_add_u32 s%d, s%d, 1" % (sRot, sRot)); a("s_cmp_ge_u32 s%d, 10" % sRot); a("s_cselect_b32 s%d, 0, s%d" % (sRot, sRot))
        issued.append(item); cnts.append(4)
        if "stampfill" in OPT and len(issued) <= 10: stamp()
    queue = []
    NQP = 0 if "noQP" in OPT else 10
    if "oldorder" in OPT:
        for j in range(min(3, NQP)): queue += [('W', j), ('X', j)]
        queue += [('K', i) for i in range(4)]
        for j in range(3, NQP): queue += [('W', j), ('X', j)]
        queue += [('V', i) for i in range(4)] + [('K', i) for i in range(4, 8)] + [('V', i) for i in range(4, 8)]
    else:
        kv = [('K', i) for i in range(4)] + [('V', i) for i in range(4)] + [('K', i) for i in range(4, 8)] + [('V', i) for i in range(4, 8)]
        for j in range(NQP):
            queue += [('W', j), ('X', j)]
            if 1 <= j <= 6: queue.append(kv.pop(0))
        queue += kv
    queue.append(('J', 0))
    allowJ = [False]
    def issueJ():
        sa, sb = free.pop(0), free.pop(0)
        a("s_cmp_lt_u32 s%d, 2" % sWv)
        a("s_mov_b32 s%d, %d" % (sT0, sa*SLOT))
        a("s_cselect_b32 s%d, s%d, %d" % (sJl, sT0, sb*SLOT))
        a("s_and_b32 s%d, s%d, 1" % (sT0, sWv)); a("s_lshl_b32 s%d, s%d, 13" % (sT0, sT0)); a("s_add_u32 s%d, s%d, s%d" % (sJl, sJl, sT0))
        a("s_lshl_b32 s%d, s2, 2" % sT0); a("s_add_u32 s%d, s%d, s%d" % (sT0, sT0, sWv))
        a("s_and_b32 s%d, s%d, 7" % (sT1, sT0)); a("s_lshr_b32 s%d, s%d, 3" % (sT0, sT0))
        a("s_mul_i32 s%d, s%d, 160" % (sT1, sT1)); a("s_mul_i32 s%d, s%d, %d" % (sT0, sT0, 32*1280)); a("s_add_u32 s%d, s%d, s%d" % (sT2, sT0, sT1))
        a("s_mov_b32 s%d, 52429" % sT0); a("s_movk_i32 s%d, 1280" % sT1); a("s_movk_i32 s%d, 10" % sT3)
        for i in range(5):
            a("v_add_u32 v%d, %d, v%d" % (vQ+5, 64*i, vL))
            a("v_mul_lo_u32 v%d, v%d, s%d" % (vQ+6, vQ+5, sT0))
            a("v_lshrrev_b32 v%d, 19, v%d" % (vQ+6, vQ+6))
            a("v_mul_lo_u32 v%d, v%d, s%d" % (vQ+7, vQ+6, sT3))
            a("v_sub_u32 v%d, v%d, v%d" % (vQ+7, vQ+5, vQ+7))
            a("v_mul_lo_u32 v%d, v%d, s%d" % (vQ+6, vQ+6, sT1))
            a("v_lshl_add_u32 v%d, v%d, 4, v%d" % (vQ+i, vQ+7, vQ+6))
        for i in range(5):
            a("s_add_u32 m0, s%d, %d" % (sJl, i*1024))
            a("s_nop 0")
            a("buffer_load_dwordx4 v%d, s[%d:%d], s%d offen nt lds" % (vQ+i, sWO, sWO+3, sT2))
        issued.append(('J', 0)); cnts.append(5)
    def fill():
        while free and queue:
            if queue[0][0] == 'J':
                if len(free) < 2 or not allowJ[0]: break
                queue.pop(0); issueJ(); continue
            issue(queue.pop(0))
    pending_free = []
    def step_begin(items):
        last = max(issued.index(it) for it in items)
        n = min(63, sum(cnts[last+1:]))
        a("s_waitcnt vmcnt(%d) lgkmcnt(0)" % n)
        a("s_barrier")
        free.extend(pending_free); pending_free.clear()
        fill()
    def step_end(items):
        for it in items: pending_free.append(slot_of[it])

    stamp(True)
    stamp()
    fill()
    stamp()

    if "nocomp" in OPT: a.mute = True
    a.c("Q projection")
    def fb(n): return vFB + 4*n
    for j in range(NQP):
        items = [('W', j), ('X', j)]
        step_begin(items)
        if j in (0, 3, 6): stamp()
        wb, xb = slot_of[('W', j)]*SLOT, slot_of[('X', j)]*SLOT
        for dt in range(4): a("v_add_u32 v%d, %d, v%d" % (vT+dt, wb, vTr+dt))
        for kk in range(4): a("v_add_u32 v%d, %d, v%d" % (vT+4+kk, xb, vXr+kk))
        def rd(kk, buf):
            b0 = buf*5
            a("ds_read_b128 %s, v%d" % (vr(fb(b0+4), 4), vT+4+kk))
            for dt in range(4):
                a("ds_read_b64_tr_b16 %s, v%d offset:%d" % (vr(fb(b0+dt), 2), vT+dt, kk*4096))
                a("ds_read_b64_tr_b16 %s, v%d offset:%d" % (vr(fb(b0+dt)+2, 2), vT+dt, kk*4096+1024))
        rd(0, 0)
        for kk in range(4):
            buf = kk & 1
            if kk < 3:
                rd(kk+1, buf ^ 1)
                a("s_waitcnt lgkmcnt(9)")
            else:
                a("s_waitcnt lgkmcnt(0)")
            for dt in range(4):
                c = "0" if (j == 0 and kk == 0) else ar(aO+16*dt, 16)
                a("v_mfma_f32_32x32x16_bf16 %s, %s, %s, %s" % (ar(aO+16*dt, 16), vr(fb(buf*5+dt), 4), vr(fb(buf*5+4), 4), c))
        step_end(items)
    a.nop(12)
    stamp()
    for dt in range(4):
        for i in range(0, 16, 2):
            a("v_accvgpr_read_b32 v%d, a%d" % (vt0, aO+16*dt+i))
            a("v_accvgpr_read_b32 v%d, a%d" % (vt1, aO+16*dt+i+1))
            a("v_cvt_pk_bf16_f32 v%d, v%d, v%d" % (vQ + 8*dt + i//2, vt0, vt1))

    for half in range(2):
        a.c("S^T half %d" % half)
        for ci in range(4):
            item = ('K', 4*half+ci)
            step_begin([item])
            kb = slot_of[item]*SLOT
            for ks in range(8): a("v_add_u32 v%d, %d, v%d" % (vT+ks, kb, vKr+ks))
            seq = [(t, ks) for t in range(2) for ks in range(8)]
            NB = 8; PF = 4
            def rdk(n):
                t, ks = seq[n]
                a("ds_read_b128 %s, v%d offset:%d" % (vr(fb(n % NB), 4), vT+ks, t*8192))
            for n in range(PF): rdk(n)
            for n, (t, ks) in enumerate(seq):
                if n + PF < len(seq):
                    rdk(n+PF); a("s_waitcnt lgkmcnt(%d)" % PF)
                else:
                    a("s_waitcnt lgkmcnt(%d)" % (len(seq)-1-n))
                T = 2*ci + t
                c = "0" if ks == 0 else vr(vS+16*T, 16)
                a("v_mfma_f32_32x32x16_bf16 %s, %s, %s, %s" % (vr(vS+16*T, 16), vr(fb(n % NB), 4), vr(vQ+4*ks, 4), c))
            step_end([item])
        a.nop(12)
        stamp()
        a.c("softmax half %d" % half)
        pm = [vt0, vt1, vt2, vt3]
        for p in range(4):
            a("v_max3_f32 v%d, v%d, v%d, v%d" % (pm[p], vS+32*p, vS+32*p+1, vS+32*p+2))
        for i in range(3, 31, 2):
            for p in range(4):
                a("v_max3_f32 v%d, v%d, v%d, v%d" % (pm[p], pm[p], vS+32*p+i, vS+32*p+i+1))
        for p in range(4):
            a("v_max_f32 v%d, v%d, v%d" % (pm[p], pm[p], vS+32*p+31))
        a("v_max3_f32 v%d, v%d, v%d, v%d" % (vt0, vt0, vt1, vt2))
        a("v_max_f32 v%d, v%d, v%d" % (vt0, vt0, vt3))
        a("v_mov_b32 v%d, v%d" % (vt1, vt0))
        a("s_nop 1")
        a("v_permlane32_swap_b32 v%d, v%d" % (vt0, vt1))
        a("v_max_f32 v%d, v%d, v%d" % (vt0, vt0, vt1))
        if half == 0:
            a("v_mov_b32 v%d, v%d" % (vM, vt0))
            a("v_mov_b32 v%d, 0" % vLsum)
        else:
            a("v_max_f32 v%d, v%d, v%d" % (vt0, vt0, vM))
            a("v_sub_f32 v%d, v%d, v%d" % (vt1, vM, vt0))
            a("v_mul_f32 v%d, s%d, v%d" % (vt1, sC, vt1))
            a("v_exp_f32 v%d, v%d" % (vF, vt1))
            a("v_mov_b32 v%d, v%d" % (vM, vt0))
            a("s_nop 0")
            a("v_mul_f32 v%d, v%d, v%d" % (vLsum, vLsum, vF))
            for i in range(64):
                a("v_accvgpr_read_b32 v%d, a%d" % (vt1 if i % 2 == 0 else vt2, aO+i))
                a("v_mul_f32 v%d, v%d, v%d" % (vt1 if i % 2 == 0 else vt2, vt1 if i % 2 == 0 else vt2, vF))
                a("v_accvgpr_write_b32 a%d, v%d" % (aO+i, vt1 if i % 2 == 0 else vt2))
        a("v_mul_f32 v%d, s%d, v%d" % (vMC, sC, vM))
        ls = [vLsum, vt3]
        a("v_mov_b32 v%d, 0" % vt3)
        for i in range(128):
            a("v_fma_f32 v%d, v%d, s%d, -v%d" % (vS+i, vS+i, sC, vMC))
        for i in range(128):
            a("v_exp_f32 v%d, v%d" % (vS+i, vS+i))
        a("s_nop 0")
        for i in range(128):
            a("v_add_f32 v%d, v%d, v%d" % (ls[i % 2], ls[i % 2], vS+i))
        a("v_add_f32 v%d, v%d, v%d" % (vLsum, vLsum, vt3))
        for T in range(8):
            for i in range(8):
                a("v_cvt_pk_bf16_f32 v%d, v%d, v%d" % (vS+16*T+i, vS+16*T+2*i, vS+16*T+2*i+1))
        a("s_nop 1")
        stamp()
        if half == 1: allowJ[0] = True
        a.c("PV half %d" % half)
        for ci in range(4):
            item = ('V', 4*half+ci)
            step_begin([item])
            vb = slot_of[item]*SLOT
            for dt in range(4): a("v_add_u32 v%d, %d, v%d" % (vT+dt, vb, vTr+dt))
            seq = [(k4, dt) for k4 in range(4) for dt in range(4)]
            NB = 8; PF = 4
            def rdv(n):
                k4, dt = seq[n]
                a("ds_read_b64_tr_b16 %s, v%d offset:%d" % (vr(fb(n % NB), 2), vT+dt, k4*4096))
                a("ds_read_b64_tr_b16 %s, v%d offset:%d" % (vr(fb(n % NB)+2, 2), vT+dt, k4*4096+1024))
            for n in range(PF): rdv(n)
            for n, (k4, dt) in enumerate(seq):
                if n + PF < len(seq):
                    rdv(n+PF); a("s_waitcnt lgkmcnt(%d)" % (2*PF))
                else:
                    a("s_waitcnt lgkmcnt(%d)" % (2*(len(seq)-1-n)))
                kst = 4*ci + k4
                T, jj = kst // 2, kst % 2
                c = "0" if (half == 0 and ci == 0 and k4 == 0) else ar(aO+16*dt, 16)
                a("v_mfma_f32_32x32x16_bf16 %s, %s, %s, %s" % (ar(aO+16*dt, 16), vr(fb(n % NB), 4), vr(vS+16*T+4*jj, 4), c))
            step_end([item])
        a.nop(12)
        stamp()
    a("v_mov_b32 v%d, v%d" % (vt1, vLsum))
    a("s_nop 1")
    a("v_permlane32_swap_b32 v%d, v%d" % (vLsum, vt1))
    a("v_add_f32 v%d, v%d, v%d" % (vLsum, vLsum, vt1))
    a("v_rcp_f32 v%d, v%d" % (vF, vLsum))
    a("s_nop 0")
    for dt in range(4):
        for jj in range(2):
            base = vS + 16*dt + 8*jj
            for i in range(8):
                a("v_accvgpr_read_b32 v%d, a%d" % (base+i, aO+16*dt+8*jj+i))
            for i in range(8):
                a("v_mul_f32 v%d, v%d, v%d" % (base+i, base+i, vF))
            for i in range(4):
                a("v_cvt_pk_bf16_f32 v%d, v%d, v%d" % (base+i, base+2*i, base+2*i+1))
            a("buffer_store_dwordx4 %s, v%d, s[%d:%d], 0 offen offset:%d" % (vr(base, 4), vOst, sO, sO+3, dt*1024+jj*512))
    a.mute = False
    a("s_waitcnt vmcnt(8)")
    a("v_lshrrev_b32 v%d, 4, v%d" % (vt1, vL))
    a("v_and_b32 v%d, 15, v%d" % (vt2, vL))
    a("v_lshrrev_b32 v%d, 2, v%d" % (vt3, vt2))
    a("v_lshl_add_u32 v%d, v%d, 3, v%d" % (vt1, vt1, vt3))
    a("s_movk_i32 s%d, 160" % sT2)
    a("v_mul_lo_u32 v%d, v%d, s%d" % (vt1, vt1, sT2))
    a("v_and_b32 v%d, 3, v%d" % (vt2, vt2))
    a("v_lshl_add_u32 v%d, v%d, 3, v%d" % (vt1, vt2, vt1))
    a("v_add_u32 v%d, s%d, v%d" % (vt1, sJl, vt1))
    a("s_lshl_b32 s%d, s2, 2" % sT0); a("s_add_u32 s%d, s%d, s%d" % (sT0, sT0, sWv))
    a("s_and_b32 s%d, s%d, 7" % (sT1, sT0)); a("s_lshr_b32 s%d, s%d, 3" % (sT0, sT0))
    a("s_mul_i32 s%d, s%d, %d" % (sT1, sT1, 5*131072)); a("s_lshl_b32 s%d, s%d, 10" % (sT0, sT0))
    a("s_add_u32 s%d, s%d, s%d" % (sT0, sT0, sT1)); a("s_add_u32 s%d, s%d, %d" % (sT0, sT0, OFF_WOT))
    a("v_lshlrev_b32 v%d, 4, v%d" % (vt2, vL))
    for nt in range(5):
        a("ds_read_b64_tr_b16 %s, v%d offset:%d" % (vr(vFB+4*nt, 2), vt1, nt*32))
        a("ds_read_b64_tr_b16 %s, v%d offset:%d" % (vr(vFB+4*nt+2, 2), vt1, nt*32+640))
    a("s_waitcnt lgkmcnt(0)")
    for nt in range(5):
        a("s_add_u32 s%d, s%d, %d" % (sT1, sT0, nt*131072))
        a("buffer_store_dwordx4 %s, v%d, s[%d:%d], s%d offen" % (vr(vFB+4*nt, 4), vt2, sO, sO+3, sT1))
    stamp()
    stamp(True)
    a.lab("k1_done")
    a("s_endpgm")

def gen_k2(a):
    sWS, sP, sOut = 8, 12, 40
    sB, sNB, sKS, sWv = 16, 17, 18, 19
    sT0, sT1, sT2 = 20, 21, 22
    sRot = 23
    sA = 24
    sBq = 32
    v0off, v1off = 1, 2
    vF = 8
    DEPTH = 4
    a.lab("k2_kernel")
    a("s_cmp_ge_u32 s2, 256")
    a("s_cbranch_scc1 k2_done")
    a("s_load_dwordx2 s[4:5], s[0:1], 56")
    a("s_load_dwordx4 s[44:47], s[0:1], 32")
    a("s_load_dwordx2 s[48:49], s[0:1], 48")
    a("v_and_b32 v3, 63, v0")
    a("v_lshrrev_b32 v4, 6, v0")
    a("s_nop 0")
    a("v_readfirstlane_b32 s%d, v4" % sWv)
    a("s_and_b32 s%d, s2, 3" % sKS)
    a("s_lshr_b32 s%d, s2, 2" % sT0); a("s_and_b32 s%d, s%d, 1" % (sT0, sT0)); a("s_lshl_b32 s%d, s%d, 2" % (sT0, sT0))
    a("s_lshr_b32 s%d, s2, 3" % sT1); a("s_and_b32 s%d, s%d, 3" % (sB, sT1))
    a("s_lshl_b32 s%d, s%d, 1" % (sRot, sB))
    a("s_add_u32 s%d, s%d, s%d" % (sB, sB, sT0))
    a("s_lshr_b32 s%d, s2, 5" % sNB)
    a("s_add_u32 s%d, s%d, s%d" % (sRot, sRot, sNB))
    a("v_lshlrev_b32 v%d, 4, v3" % v0off)
    a("s_waitcnt lgkmcnt(0)")
    a("s_mov_b32 s%d, s4" % sWS); a("s_and_b32 s%d, s5, 0xffff" % (sWS+1)); a("s_mov_b32 s%d, %d" % (sWS+2, OFF_PART)); a("s_mov_b32 s%d, 0x20000" % (sWS+3))
    a("s_add_u32 s%d, s4, %d" % (sP, OFF_PART)); a("s_addc_u32 s%d, s5, 0" % (sP+1)); a("s_and_b32 s%d, s%d, 0xffff" % (sP+1, sP+1))
    a("s_mov_b32 s%d, %d" % (sP+2, 4*64*35*1024)); a("s_mov_b32 s%d, 0x20000" % (sP+3))
    a("s_mov_b32 s%d, s46" % sOut); a("s_and_b32 s%d, s47, 0xffff" % (sOut+1)); a("s_mov_b32 s%d, %d" % (sOut+2, 896*640*2)); a("s_mov_b32 s%d, 0x20000" % (sOut+3))
    a("s_mov_b32 s52, s48"); a("s_and_b32 s53, s49, 0xffff"); a("s_mov_b32 s54, 256"); a("s_mov_b32 s55, 0x20000")
    a("s_lshl_b32 s%d, s%d, 5" % (sT0, sKS)); a("s_lshl_b32 s%d, s%d, 3" % (sT1, sWv)); a("s_add_u32 s%d, s%d, s%d" % (sT0, sT0, sT1))
    a("s_lshl_b32 s%d, s%d, 10" % (sT0, sT0))
    a("s_mul_i32 s%d, s%d, %d" % (sT1, sNB, 5*131072)); a("s_add_u32 s%d, s%d, s%d" % (sT1, sT1, sT0)); a("s_add_u32 s%d, s%d, %d" % (sT1, sT1, OFF_WOT))
    for n in range(5): a("s_add_u32 s%d, s%d, %d" % (sA+n, sT1, n*131072))
    a("s_mul_i32 s%d, s%d, %d" % (sT1, sB, 7*131072)); a("s_add_u32 s%d, s%d, s%d" % (sT1, sT1, sT0))
    for r in range(7): a("s_add_u32 s%d, s%d, %d" % (sBq+r, sT1, r*131072))
    def ld(k):
        buf = k % DEPTH
        a("s_add_u32 s%d, s%d, %d" % (sT2, sRot, k)); a("s_and_b32 s%d, s%d, 7" % (sT2, sT2)); a("s_lshl_b32 s%d, s%d, 10" % (sT2, sT2))
        a("v_add_u32 v%d, s%d, v%d" % (v1off, sT2, v0off))
        for f in range(12):
            sb = sA+f if f < 5 else sBq+f-5
            a("buffer_load_dwordx4 %s, v%d, s[%d:%d], s%d offen" % (vr(vF+(buf*12+f)*4, 4), v1off, sWS, sWS+3, sb))
    for k in range(DEPTH): ld(k)
    for k in range(8):
        buf = k % DEPTH
        rem = min(8, k+DEPTH) - (k+1)
        a("s_waitcnt vmcnt(%d)" % (12*rem))
        for n in range(5):
            for r in range(7):
                t = n*7 + r
                c = "0" if k == 0 else ar(4*t, 4)
                a("v_mfma_f32_16x16x32_bf16 %s, %s, %s, %s" % (ar(4*t, 4), vr(vF+(buf*12+n)*4, 4), vr(vF+(buf*12+5+r)*4, 4), c))
        if k + DEPTH < 8: ld(k+DEPTH)
    a.nop(10)
    a("s_mul_i32 s%d, s%d, %d" % (sT0, sWv, 35*1024))
    a("v_add_u32 v4, s%d, v%d" % (sT0, v0off))
    for t in range(35):
        a("ds_write_b128 v4, %s offset:%d" % (ar(4*t, 4), t*1024))
    a("s_waitcnt lgkmcnt(0)")
    a("s_barrier")
    sBN = 56
    a("s_lshl_b32 s%d, s%d, 3" % (sBN, sB)); a("s_add_u32 s%d, s%d, s%d" % (sBN, sBN, sNB))
    a("s_lshl_b32 s%d, s%d, 10" % (sT1, sWv))
    a("s_mul_i32 s%d, s%d, %d" % (sT0, sBN, 35*1024)); a("s_add_u32 s%d, s%d, s%d" % (sT0, sT0, sT1))
    sPB = 57
    a("s_mov_b32 s%d, s%d" % (sPB, sT0))
    a("s_mul_i32 s%d, s%d, %d" % (sT2, sKS, 64*35*1024)); a("s_add_u32 s%d, s%d, s%d" % (sT0, sT0, sT2))
    a("v_add_u32 v4, s%d, v%d" % (sT1, v0off))
    a("v_add_u32 v5, %d, v4" % (35*1024))
    a("v_add_u32 v6, %d, v4" % (2*35*1024))
    a("v_add_u32 v7, %d, v4" % (3*35*1024))
    for i in range(9):
        o = i*4096
        if i == 8:
            a("s_cmp_ge_u32 s%d, 3" % sWv)
            a("s_cbranch_scc1 k2_st_done")
        a("ds_read_b128 v[8:11], v4 offset:%d" % o)
        a("ds_read_b128 v[12:15], v5 offset:%d" % o)
        a("ds_read_b128 v[16:19], v6 offset:%d" % o)
        a("ds_read_b128 v[20:23], v7 offset:%d" % o)
        a("s_waitcnt lgkmcnt(0)")
        for e in range(4):
            a("v_add_f32 v%d, v%d, v%d" % (8+e, 8+e, 12+e))
            a("v_add_f32 v%d, v%d, v%d" % (16+e, 16+e, 20+e))
        d = 24 + 4*i
        for e in range(4):
            a("v_add_f32 v%d, v%d, v%d" % (d+e, 8+e, 16+e))
        a("s_add_u32 s%d, s%d, %d" % (sT1, sT0, o))
        a("buffer_store_dwordx4 v[%d:%d], v%d, s[%d:%d], s%d offen sc0 sc1" % (d, d+3, v0off, sP, sP+3, sT1))
    a.lab("k2_st_done")
    a("s_waitcnt vmcnt(0)")
    a("s_barrier")
    a("s_cmp_lg_u32 s%d, 0" % sWv)
    a("s_cbranch_scc1 k2_wait")
    a("s_lshl_b32 s%d, s%d, 2" % (sT1, sBN))
    a("v_mov_b32 v4, 1")
    a("v_mov_b32 v5, s%d" % sT1)
    a("s_mov_b64 s[58:59], exec")
    a("s_mov_b64 exec, 1")
    a("buffer_atomic_add v4, v5, s[52:55], 0 offen sc0 sc1")
    a("s_waitcnt vmcnt(0)")
    a("v_mov_b32 v5, 0")
    a("ds_write_b32 v5, v4")
    a("s_waitcnt lgkmcnt(0)")
    a("s_mov_b64 exec, s[58:59]")
    a.lab("k2_wait")
    a("s_barrier")
    a("v_mov_b32 v5, 0")
    a("ds_read_b32 v4, v5")
    a("s_waitcnt lgkmcnt(0)")
    a("s_nop 0")
    a("v_readfirstlane_b32 s%d, v4" % sT1)
    a("s_nop 3")
    a("s_cmp_lg_u32 s%d, 3" % sT1)
    a("s_cbranch_scc1 k2_done")
    a("v_and_b32 v4, 15, v3")
    a("s_mul_i32 s%d, s%d, 112" % (sT1, sB))
    a("v_add_u32 v4, s%d, v4" % sT1)
    a("s_movk_i32 s%d, 1280" % sT1)
    a("v_mul_lo_u32 v4, v4, s%d" % sT1)
    a("v_lshrrev_b32 v5, 4, v3")
    a("v_lshl_add_u32 v4, v5, 3, v4")
    a("s_mul_i32 s%d, s%d, 160" % (sT1, sNB))
    a("v_add_u32 v4, s%d, v4" % sT1)
    def tile_loads(i):
        for ks in range(4):
            a("s_add_u32 s%d, s%d, %d" % (sT1, sPB, ks*64*35*1024 + i*4096))
            d = 64 + (i % 3)*16 + 4*ks
            a("buffer_load_dwordx4 v[%d:%d], v%d, s[%d:%d], s%d offen sc0 sc1" % (d, d+3, v0off, sP, sP+3, sT1))
    def tile_fin(i):
        d = 64 + (i % 3)*16
        a("s_add_u32 s%d, s%d, %d" % (sT0, sWv, 4*i))
        a("s_mul_i32 s%d, s%d, 37" % (sT1, sT0)); a("s_lshr_b32 s%d, s%d, 8" % (sT1, sT1))
        a("s_mul_i32 s%d, s%d, 7" % (sT2, sT1)); a("s_sub_u32 s%d, s%d, s%d" % (sT2, sT0, sT2))
        a("s_mul_i32 s%d, s%d, %d" % (sT2, sT2, 16*1280)); a("s_lshl_b32 s%d, s%d, 5" % (sT1, sT1)); a("s_add_u32 s%d, s%d, s%d" % (sT1, sT1, sT2))
        for e in range(4):
            a("v_add_f32 v%d, v%d, v%d" % (d+e, d+e, d+4+e))
            a("v_add_f32 v%d, v%d, v%d" % (d+8+e, d+8+e, d+12+e))
        for e in range(4):
            a("v_add_f32 v%d, v%d, v%d" % (d+e, d+e, d+8+e))
        a("v_cvt_pk_bf16_f32 v%d, v%d, v%d" % (60, d, d+1))
        a("v_cvt_pk_bf16_f32 v%d, v%d, v%d" % (61, d+2, d+3))
        a("buffer_store_dwordx2 v[60:61], v4, s[%d:%d], s%d offen" % (sOut, sOut+3, sT1))
        a("s_nop 1")
    tile_loads(0); tile_loads(1)
    for i in range(8):
        if i + 2 < 8:
            tile_loads(i+2); a("s_waitcnt vmcnt(8)")
        elif i + 1 < 8:
            a("s_waitcnt vmcnt(4)")
        else:
            a("s_waitcnt vmcnt(0)")
        tile_fin(i)
    a("s_cmp_ge_u32 s%d, 3" % sWv)
    a("s_cbranch_scc1 k2_done")
    tile_loads(8)
    a("s_waitcnt vmcnt(0)")
    tile_fin(8)
    a.lab("k2_done")
    a("s_endpgm")

def gen_k3(a):
    a.lab("k3_kernel")
    a("s_cmp_ge_u32 s2, 560")
    a("s_cbranch_scc1 k3_done")
    a("s_load_dwordx2 s[4:5], s[0:1], 56")
    a("s_load_dwordx2 s[6:7], s[0:1], 40")
    a("v_and_b32 v3, 63, v0")
    a("v_lshrrev_b32 v4, 6, v0")
    a("s_nop 0")
    a("v_readfirstlane_b32 s16, v4")
    a("s_lshl_b32 s17, s2, 2")
    a("s_add_u32 s17, s17, s16")
    a("s_mul_i32 s18, s17, 29960"); a("s_lshr_b32 s18, s18, 20")
    a("s_mul_i32 s19, s18, 35"); a("s_sub_u32 s19, s17, s19")
    a("s_mul_i32 s20, s19, 37"); a("s_lshr_b32 s20, s20, 8")
    a("s_mul_i32 s21, s20, 7"); a("s_sub_u32 s21, s19, s21")
    a("s_lshr_b32 s22, s18, 3")
    a("s_and_b32 s23, s18, 7")
    a("s_waitcnt lgkmcnt(0)")
    a("s_add_u32 s8, s4, %d" % OFF_PART); a("s_addc_u32 s9, s5, 0"); a("s_and_b32 s9, s9, 0xffff")
    a("s_mov_b32 s10, %d" % (4*64*35*1024)); a("s_mov_b32 s11, 0x20000")
    a("s_mov_b32 s12, s6"); a("s_and_b32 s13, s7, 0xffff"); a("s_mov_b32 s14, %d" % (896*640*2)); a("s_mov_b32 s15, 0x20000")
    a("v_lshlrev_b32 v1, 4, v3")
    a("s_lshl_b32 s24, s17, 10")
    for ks in range(4):
        a("s_add_u32 s25, s24, %d" % (ks*64*35*1024))
        a("buffer_load_dwordx4 v[%d:%d], v1, s[8:11], s25 offen" % (8+4*ks, 11+4*ks))
    a("s_mul_i32 s26, s22, 112"); a("s_lshl_b32 s27, s21, 4"); a("s_add_u32 s26, s26, s27")
    a("s_mul_i32 s27, s23, 80"); a("s_lshl_b32 s28, s20, 4"); a("s_add_u32 s27, s27, s28")
    a("v_and_b32 v4, 15, v3")
    a("v_add_u32 v4, s26, v4")
    a("s_mov_b32 s28, 1280")
    a("v_mul_lo_u32 v4, v4, s28")
    a("v_lshrrev_b32 v5, 4, v3")
    a("v_lshlrev_b32 v5, 3, v5")
    a("v_add_u32 v4, v4, v5")
    a("s_lshl_b32 s27, s27, 1")
    a("v_add_u32 v4, s27, v4")
    a("s_waitcnt vmcnt(0)")
    for e in range(4):
        a("v_add_f32 v%d, v%d, v%d" % (8+e, 8+e, 12+e))
        a("v_add_f32 v%d, v%d, v%d" % (16+e, 16+e, 20+e))
    for e in range(4):
        a("v_add_f32 v%d, v%d, v%d" % (8+e, 8+e, 16+e))
    a("v_cvt_pk_bf16_f32 v24, v8, v9")
    a("v_cvt_pk_bf16_f32 v25, v10, v11")
    a("buffer_store_dwordx2 v[24:25], v4, s[12:15], 0 offen")
    a.lab("k3_done")
    a("s_endpgm")

HDR = """; Kernarg layout (64 bytes): x, k_cache, v_cache, wq, wo, d_out, d_debug, d_ws
; @launch kernel=k1_kernel grid=(256,1,1) block=(256,1,1) lds=163840
; @launch kernel=k2_kernel grid=(256,1,1) block=(256,1,1) lds=143360
.amdgcn_target "amdgcn-amd-amdhsa--gfx950"
.text
"""
def kd(name, vgpr, sgpr, acc):
    return """.amdhsa_kernel %s
  .amdhsa_next_free_vgpr %d
  .amdhsa_next_free_sgpr %d
  .amdhsa_accum_offset %d
  .amdhsa_group_segment_fixed_size 0
  .amdhsa_kernarg_size 64
  .amdhsa_user_sgpr_count 2
  .amdhsa_user_sgpr_kernarg_segment_ptr 1
  .amdhsa_system_sgpr_workgroup_id_x 1
.end_amdhsa_kernel
""" % (name, vgpr, sgpr, acc)

def main():
    out = HDR
    for name, fn in (("k1_kernel", gen_k1), ("k2_kernel", gen_k2)):
        a = A(); fn(a)
        out += ".globl %s\n.p2align 8\n.type %s,@function\n" % (name, name) + a.text()
    import struct, math
    cbits = struct.unpack("<I", struct.pack("<f", 128**-0.5 * math.log2(math.e)))[0]
    out = out.replace("0x3e0293ee", "0x%08x" % cbits)
    out += '.section .rodata,"a"\n.p2align 6\n'
    out += kd("k1_kernel", 320, 102, 256)
    out += ".p2align 6\n" + kd("k2_kernel", 8+192+140, 102, 200)
    open(sys.argv[1] if len(sys.argv) > 1 else "standalone__gqa_block_cached__near_ridge.s", "w").write(out)

main()
```

```python
import sys

OFF_O    = 0
OFF_WOT  = 8 << 20
OFF_PART = 16 << 20
WS_BYTES = 268435456

class A:
    def __init__(s): s.l = []
    mute = False
    def __call__(s, x):
        if s.mute and not x.startswith(("s_waitcnt","s_barrier","buffer_load","s_add_u32","s_mov_b32 s","s_mem","v_mov_b32 v46","v_mov_b32 v45","s_lshl_b32 s62","s_mov_b64","buffer_store_dword v46")): return
        s.l.append("    " + x)
    def lab(s, x): s.l.append(x + ":")
    def c(s, x): s.l.append("    ; " + x)
    def nop(s, n):
        while n > 0:
            k = min(n, 16); s("s_nop %d" % (k - 1)); n -= k
    def text(s): return "\n".join(s.l) + "\n"

def vr(b, n): return "v[%d:%d]" % (b, b + n - 1)
def ar(b, n): return "a[%d:%d]" % (b, b + n - 1)

STAMPS = len(sys.argv) > 2 and "stamp" in sys.argv[2:]
OPT = set(sys.argv[2:])
OFF_DBG = 32 << 20
def gen_k1(a):
    nst = [0]
    def stamp(real=False):
        if not STAMPS: return
        a("s_memrealtime s[60:61]" if real else "s_memtime s[60:61]")
        a("s_waitcnt lgkmcnt(0)")
        a("v_mov_b32 v%d, s60" % 46)
        a("s_lshl_b32 s62, s2, 8")
        a("s_add_u32 s62, s62, %d" % (nst[0]*4))
        a("s_mov_b64 s[64:65], exec")
        a("s_mov_b64 exec, 1")
        a("v_mov_b32 v45, 0")
        a("buffer_store_dword v46, v45, s[68:71], s62 offen")
        a("s_mov_b64 exec, s[64:65]")
        nst[0] += 1
    SLOT = 16384
    NSLOT = 10
    sX, sK, sV, sW, sO, sWO = 8, 12, 16, 20, 24, 28
    sWv = 32
    sW4k = 33
    sB, sH = 34, 35
    sT0, sT1, sT2, sT3 = 36, 37, 38, 39
    sXoff = 40
    sC = 41
    sWoff = 42
    sRot = 52
    sJl = 53
    vTid = 0
    vL = 1
    vKd = 2
    vVd = 6
    vWd = 7
    vXd = 11
    vXr = 15
    vTr = 19
    vKr = 23
    vT = 31
    vM, vLsum, vMC, vF = 39, 40, 41, 42
    vt0, vt1, vt2, vt3 = 43, 44, 45, 46
    vOst = 47
    vO = 48
    vS = 112
    vQ = 240
    vFB = 112
    aQ = 0
    aF = 32

    a.lab("k1_kernel")
    a("s_cmp_ge_u32 s2, 256")
    a("s_cbranch_scc1 k1_done")
    a("s_load_dwordx4 s[4:7], s[0:1], 0")
    a("s_load_dwordx4 s[44:47], s[0:1], 16")
    a("s_load_dwordx2 s[48:49], s[0:1], 32")
    a("s_load_dwordx2 s[50:51], s[0:1], 56")
    a("v_and_b32 v%d, 63, v0" % vL)
    a("v_lshrrev_b32 v%d, 6, v0" % vt0)
    a("s_nop 0")
    a("v_readfirstlane_b32 s%d, v%d" % (sWv, vt0))
    a("s_lshr_b32 s%d, s2, 5" % sB)
    a("s_and_b32 s%d, s2, 7" % sT0)
    a("s_lshl_b32 s%d, s%d, 2" % (sT0, sT0))
    a("s_lshr_b32 s%d, s2, 3" % sT1)
    a("s_and_b32 s%d, s%d, 3" % (sT1, sT1))
    a("s_add_u32 s%d, s%d, s%d" % (sH, sT0, sT1))
    if "mapB" in OPT:
        a("s_and_b32 s%d, s2, 7" % sB)
        a("s_lshr_b32 s%d, s2, 3" % sH)
    a("s_lshl_b32 s%d, s%d, 12" % (sW4k, sWv))
    a("s_mov_b32 s%d, 0x3e0293ee" % sC)
    a("s_waitcnt lgkmcnt(0)")
    a("s_mov_b32 s%d, s4" % sX); a("s_and_b32 s%d, s5, 0xffff" % (sX+1)); a("s_mov_b32 s%d, %d" % (sX+2, 8*112*640*2)); a("s_mov_b32 s%d, 0x20000" % (sX+3))
    a("s_lshl_b32 s%d, s%d, 5" % (sT0, sB)); a("s_add_u32 s%d, s%d, s%d" % (sT0, sT0, sH))
    a("s_lshl_b32 s%d, s%d, 17" % (sT1, sT0))
    a("s_add_u32 s%d, s6, s%d" % (sK, sT1)); a("s_addc_u32 s%d, s7, 0" % (sK+1)); a("s_and_b32 s%d, s%d, 0xffff" % (sK+1, sK+1))
    a("s_mov_b32 s%d, 131072" % (sK+2)); a("s_mov_b32 s%d, 0x20000" % (sK+3))
    a("s_add_u32 s%d, s44, s%d" % (sV, sT1)); a("s_addc_u32 s%d, s45, 0" % (sV+1)); a("s_and_b32 s%d, s%d, 0xffff" % (sV+1, sV+1))
    a("s_mov_b32 s%d, 131072" % (sV+2)); a("s_mov_b32 s%d, 0x20000" % (sV+3))
    a("s_mov_b32 s%d, s46" % sW); a("s_and_b32 s%d, s47, 0xffff" % (sW+1)); a("s_mov_b32 s%d, %d" % (sW+2, 640*4096*2)); a("s_mov_b32 s%d, 0x20000" % (sW+3))
    a("s_mov_b32 s%d, s50" % sO); a("s_and_b32 s%d, s51, 0xffff" % (sO+1)); a("s_mov_b32 s%d, %d" % (sO+2, OFF_PART)); a("s_mov_b32 s%d, 0x20000" % (sO+3))
    a("s_mov_b32 s%d, s48" % sWO); a("s_and_b32 s%d, s49, 0xffff" % (sWO+1)); a("s_mov_b32 s%d, %d" % (sWO+2, 4096*640*2)); a("s_mov_b32 s%d, 0x20000" % (sWO+3))
    a("s_add_u32 s68, s50, %d" % OFF_DBG); a("s_addc_u32 s69, s51, 0"); a("s_and_b32 s69, s69, 0xffff"); a("s_mov_b32 s70, 65536"); a("s_mov_b32 s71, 0x20000")
    a("s_mul_i32 s%d, s%d, %d" % (sXoff, sB, 112*1280))
    a("s_lshl_b32 s%d, s%d, 8" % (sWoff, sH))
    a("s_and_b32 s%d, s%d, 3" % (sT0, sH)); a("s_mul_i32 s%d, s%d, 3" % (sT0, sT0)); a("s_add_u32 s%d, s%d, s%d" % (sRot, sT0, sB))
    a("s_cmp_ge_u32 s%d, 10" % sRot); a("s_cselect_b32 s%d, 10, 0" % sT0); a("s_sub_u32 s%d, s%d, s%d" % (sRot, sRot, sT0))
    if "norot" in OPT: a("s_mov_b32 s%d, 0" % sRot)
    if "fakeW" in OPT: a("s_mul_i32 s%d, s%d, %d" % (sWoff, sH, 163840))

    l16 = vt0; lhi = vt1
    a("v_and_b32 v%d, 15, v%d" % (l16, vL))
    a("v_lshrrev_b32 v%d, 4, v%d" % (lhi, vL))
    for i in range(4):
        a("v_add_u32 v%d, %d, v%d" % (vt2, 4*i, lhi))
        a("v_xor_b32 v%d, v%d, v%d" % (vt2, vt2, l16))
        a("v_lshlrev_b32 v%d, 4, v%d" % (vt2, vt2))
        a("v_lshl_add_u32 v%d, v%d, 8, v%d" % (vt2, lhi, vt2))
        a("v_add_u32 v%d, %d, v%d" % (vKd+i, 1024*i, vt2))
        a("v_add_u32 v%d, s%d, v%d" % (vKd+i, sW4k, vKd+i))
    a("v_lshlrev_b32 v%d, 2, v%d" % (vt2, lhi))
    a("v_xor_b32 v%d, v%d, v%d" % (vt2, vt2, l16))
    a("v_lshlrev_b32 v%d, 4, v%d" % (vt2, vt2))
    a("v_lshl_add_u32 v%d, v%d, 8, v%d" % (vVd, lhi, vt2))
    a("v_add_u32 v%d, s%d, v%d" % (vVd, sW4k, vVd))
    a("s_lshl_b32 s%d, s%d, 17" % (sT0, sWv))
    if "fakeW" in OPT: a("s_lshl_b32 s%d, s%d, 12" % (sT0, sWv))
    for i in range(4):
        a("v_add_u32 v%d, %d, v%d" % (vt3, 4*i, lhi))
        a("v_lshl_add_u32 v%d, v%d, %d, v%d" % (vWd+i, vt3, 8 if "fakeW" in OPT else 13, vt2))
        a("v_add_u32 v%d, s%d, v%d" % (vWd+i, sT0, vWd+i))
    a("v_and_b32 v%d, 7, v%d" % (vt2, vL))
    a("v_lshrrev_b32 v%d, 3, v%d" % (vt3, vL))
    a("s_mul_i32 s%d, s%d, %d" % (sT0, sWv, 32*1280))
    a("s_mov_b32 s%d, 1280" % sT1)
    for i in range(4):
        a("v_add_u32 v%d, %d, v%d" % (vT, 4*i, lhi))
        a("v_and_b32 v%d, 7, v%d" % (vT, vT))
        a("v_xor_b32 v%d, v%d, v%d" % (vT, vT, vt2))
        a("v_lshlrev_b32 v%d, 4, v%d" % (vT, vT))
        a("v_add_u32 v%d, %d, v%d" % (vT+1, 8*i, vt3))
        a("v_mul_lo_u32 v%d, v%d, s%d" % (vT+1, vT+1, sT1))
        a("v_add_u32 v%d, v%d, v%d" % (vXd+i, vT, vT+1))
        a("v_add_u32 v%d, s%d, v%d" % (vXd+i, sT0, vXd+i))
        a("v_mov_b32 v%d, 0x7fff0000" % (vT+2))
        a("v_cmp_gt_u32 vcc, %d, v%d" % (112*1280, vXd+i))
        a("s_nop 1")
        a("v_cndmask_b32 v%d, v%d, v%d, vcc" % (vXd+i, vT+2, vXd+i))
    l31 = vt2; g = vt3
    a("v_and_b32 v%d, 31, v%d" % (l31, vL))
    a("v_lshrrev_b32 v%d, 5, v%d" % (g, vL))
    a("v_lshrrev_b32 v%d, 1, v%d" % (vT, l31))
    a("v_and_b32 v%d, 7, v%d" % (vT, vT))
    a("v_lshlrev_b32 v%d, 7, v%d" % (vT+1, l31))
    a("v_add_u32 v%d, s%d, v%d" % (vT+1, sW4k, vT+1))
    for kk in range(4):
        a("v_add_u32 v%d, %d, v%d" % (vT+2, 2*kk, g))
        a("v_xor_b32 v%d, v%d, v%d" % (vT+2, vT+2, vT))
        a("v_lshl_add_u32 v%d, v%d, 4, v%d" % (vXr+kk, vT+2, vT+1))
    def swap23(dst, src, t1, t2):
        a("v_and_b32 v%d, 0x13, v%d" % (dst, src))
        a("v_and_b32 v%d, 4, v%d" % (t1, src))
        a("v_and_b32 v%d, 8, v%d" % (t2, src))
        a("v_lshlrev_b32 v%d, 1, v%d" % (t1, t1))
        a("v_lshrrev_b32 v%d, 1, v%d" % (t2, t2))
        a("v_or3_b32 v%d, v%d, v%d, v%d" % (dst, dst, t1, t2))
    swap23(vT, l31, vT+1, vT+2)
    a("v_and_b32 v%d, 15, v%d" % (vT+1, vT))
    for ks in range(8):
        a("v_add_u32 v%d, %d, v%d" % (vT+2, 2*ks, g))
        a("v_xor_b32 v%d, v%d, v%d" % (vT+2, vT+2, vT+1))
        a("v_lshlrev_b32 v%d, 4, v%d" % (vT+2, vT+2))
        a("v_lshl_add_u32 v%d, v%d, 8, v%d" % (vKr+ks, vT, vT+2))
    r_, c_, kr, dq = vT, vT+1, vT+2, vT+3
    a("v_lshrrev_b32 v%d, 2, v%d" % (r_, l16))
    a("v_and_b32 v%d, 3, v%d" % (c_, l16))
    a("v_lshrrev_b32 v%d, 1, v%d" % (kr, lhi))
    a("v_lshl_add_u32 v%d, v%d, 3, v%d" % (kr, kr, r_))
    a("v_and_b32 v%d, 1, v%d" % (vT+4, c_))
    a("v_lshrrev_b32 v%d, 1, v%d" % (vT+5, c_))
    a("v_lshl_or_b32 v%d, v%d, 1, v%d" % (dq, vT+4, vT+5))
    a("v_and_b32 v%d, 1, v%d" % (vT+4, lhi))
    a("v_lshl_add_u32 v%d, v%d, 2, v%d" % (dq, vT+4, dq))
    a("v_lshrrev_b32 v%d, 1, v%d" % (vT+4, dq))
    a("v_and_b32 v%d, 1, v%d" % (vT+5, dq))
    a("v_lshlrev_b32 v%d, 3, v%d" % (vT+5, vT+5))
    a("v_lshl_add_u32 v%d, v%d, 8, v%d" % (vT+5, kr, vT+5))
    a("v_lshlrev_b32 v%d, 2, v%d" % (vT+6, r_))
    for dt in range(4):
        a("v_add_u32 v%d, %d, v%d" % (vT+7, 4*dt, vT+4))
        a("v_xor_b32 v%d, v%d, v%d" % (vT+7, vT+7, vT+6))
        a("v_lshl_add_u32 v%d, v%d, 4, v%d" % (vTr+dt, vT+7, vT+5))
    a("s_lshl_b32 s%d, s%d, 5" % (sT0, sWv))
    a("v_add_u32 v%d, s%d, v%d" % (vT, sT0, l31))
    a("v_lshrrev_b32 v%d, 4, v%d" % (vT+1, vT))
    a("s_mul_i32 s%d, s%d, 7" % (sT1, sB))
    a("v_add_u32 v%d, s%d, v%d" % (vT+1, sT1, vT+1))
    a("v_lshlrev_b32 v%d, 17, v%d" % (vT+1, vT+1))
    a("v_and_b32 v%d, 15, v%d" % (vT+2, vT))
    a("v_lshl_add_u32 v%d, v%d, 4, v%d" % (vT+1, vT+2, vT+1))
    a("v_lshl_add_u32 v%d, v%d, 8, v%d" % (vT+1, g, vT+1))
    a("s_lshl_b32 s%d, s%d, 12" % (sT1, sH))
    a("v_add_u32 v%d, s%d, v%d" % (vT+1, sT1, vT+1))
    a("v_mov_b32 v%d, 0x7fff0000" % (vT+2))
    a("v_cmp_gt_u32 vcc, 112, v%d" % vT)
    a("s_nop 1")
    a("v_cndmask_b32 v%d, v%d, v%d, vcc" % (vOst, vT+2, vT+1))

    free = list(range(NSLOT))
    slot_of = {}
    issued = []
    cnts = []
    def issue(item):
        s = free.pop(0)
        slot_of[item] = s
        kind, idx = item
        for i in range(4):
            a("s_add_u32 m0, s%d, %d" % (sW4k, s*SLOT + i*1024))
            if kind == 'K':
                a("s_mov_b32 s%d, %d" % (sT0, idx*SLOT))
                a("buffer_load_dwordx4 v%d, s[%d:%d], s%d offen %s lds" % (vKd+i, sK, sK+3, sT0, "" if "nontkv" in OPT else "nt"))
            elif kind == 'V':
                a("s_mov_b32 s%d, %d" % (sT0, idx*SLOT + i*1024))
                a("buffer_load_dwordx4 v%d, s[%d:%d], s%d offen %s lds" % (vVd, sV, sV+3, sT0, "" if "nontkv" in OPT else "nt"))
            elif kind == 'W':
                if i == 0:
                    a("s_lshl_b32 s%d, s%d, 19" % (sT1, sRot)); a("s_add_u32 s%d, s%d, s%d" % (sT1, sT1, sWoff))
                a("s_mov_b32 s%d, s%d" % (sT0, sT1))
                a("buffer_load_dwordx4 v%d, s[%d:%d], s%d offen %s lds" % (vWd+i, sW, sW+3, sT0, "nt" if "ntW" in OPT else ""))
            elif kind == 'X':
                if i == 0:
                    a("s_lshl_b32 s%d, s%d, 7" % (sT1, sRot)); a("s_add_u32 s%d, s%d, s%d" % (sT1, sT1, sXoff))
                a("s_mov_b32 s%d, s%d" % (sT0, sT1))
                a("buffer_load_dwordx4 v%d, s[%d:%d], s%d offen %s lds" % (vXd+i, sX, sX+3, sT0, "nt" if "ntW" in OPT else ""))
        if kind == 'X':
            a("s_add_u32 s%d, s%d, 1" % (sRot, sRot)); a("s_cmp_ge_u32 s%d, 10" % sRot); a("s_cselect_b32 s%d, 0, s%d" % (sRot, sRot))
        issued.append(item); cnts.append(4)
        if "stampfill" in OPT and len(issued) <= 10: stamp()
    queue = []
    NQP = 0 if "noQP" in OPT else 10
    if "oldorder" in OPT:
        for j in range(min(3, NQP)): queue += [('W', j), ('X', j)]
        queue += [('K', i) for i in range(4)]
        for j in range(3, NQP): queue += [('W', j), ('X', j)]
        queue += [('V', i) for i in range(4)] + [('K', i) for i in range(4, 8)] + [('V', i) for i in range(4, 8)]
    else:
        kv = [('K',0),('K',1),('K',2),('K',3),('V',0),('V',1),('K',4),('K',5),('V',2),('V',3),('K',6),('K',7),('V',4),('V',5),('V',6),('V',7)]
        for j in range(NQP):
            queue += [('W', j), ('X', j)]
            if 1 <= j <= 6: queue.append(kv.pop(0))
        queue += kv
    queue.append(('J', 0))
    allowJ = [False]
    def issueJ():
        sa, sb = free.pop(0), free.pop(0)
        a("s_cmp_lt_u32 s%d, 2" % sWv)
        a("s_mov_b32 s%d, %d" % (sT0, sa*SLOT))
        a("s_cselect_b32 s%d, s%d, %d" % (sJl, sT0, sb*SLOT))
        a("s_and_b32 s%d, s%d, 1" % (sT0, sWv)); a("s_lshl_b32 s%d, s%d, 13" % (sT0, sT0)); a("s_add_u32 s%d, s%d, s%d" % (sJl, sJl, sT0))
        a("s_lshl_b32 s%d, s2, 2" % sT0); a("s_add_u32 s%d, s%d, s%d" % (sT0, sT0, sWv))
        a("s_and_b32 s%d, s%d, 7" % (sT1, sT0)); a("s_lshr_b32 s%d, s%d, 3" % (sT0, sT0))
        a("s_mul_i32 s%d, s%d, 160" % (sT1, sT1)); a("s_mul_i32 s%d, s%d, %d" % (sT0, sT0, 32*1280)); a("s_add_u32 s%d, s%d, s%d" % (sT2, sT0, sT1))
        a("s_mov_b32 s%d, 52429" % sT0); a("s_movk_i32 s%d, 1280" % sT1); a("s_movk_i32 s%d, 10" % sT3)
        for i in range(5):
            a("v_add_u32 v%d, %d, v%d" % (vQ+5, 64*i, vL))
            a("v_mul_lo_u32 v%d, v%d, s%d" % (vQ+6, vQ+5, sT0))
            a("v_lshrrev_b32 v%d, 19, v%d" % (vQ+6, vQ+6))
            a("v_mul_lo_u32 v%d, v%d, s%d" % (vQ+7, vQ+6, sT3))
            a("v_sub_u32 v%d, v%d, v%d" % (vQ+7, vQ+5, vQ+7))
            a("v_mul_lo_u32 v%d, v%d, s%d" % (vQ+6, vQ+6, sT1))
            a("v_lshl_add_u32 v%d, v%d, 4, v%d" % (vQ+i, vQ+7, vQ+6))
        for i in range(5):
            a("s_add_u32 m0, s%d, %d" % (sJl, i*1024))
            a("s_nop 0")
            a("buffer_load_dwordx4 v%d, s[%d:%d], s%d offen nt lds" % (vQ+i, sWO, sWO+3, sT2))
        issued.append(('J', 0)); cnts.append(5)
    def fill():
        while free and queue:
            if queue[0][0] == 'J':
                if len(free) < 2 or not allowJ[0]: break
                queue.pop(0); issueJ(); continue
            issue(queue.pop(0))
    pending_free = []
    def step_begin(items):
        last = max(issued.index(it) for it in items)
        n = min(63, sum(cnts[last+1:]))
        a("s_waitcnt vmcnt(%d) lgkmcnt(0)" % n)
        a("s_barrier")
        free.extend(pending_free); pending_free.clear()
        fill()
    def step_end(items):
        for it in items: pending_free.append(slot_of[it])

    stamp(True)
    stamp()
    fill()
    stamp()

    a.c("Q projection")
    def fa(n): return aF + 4*n
    for j in range(NQP):
        items = [('W', j), ('X', j)]
        step_begin(items)
        if j in (0, 3, 6): stamp()
        wb, xb = slot_of[('W', j)]*SLOT, slot_of[('X', j)]*SLOT
        for dt in range(4): a("v_add_u32 v%d, %d, v%d" % (vT+dt, wb, vTr+dt))
        for kk in range(4): a("v_add_u32 v%d, %d, v%d" % (vT+4+kk, xb, vXr+kk))
        def rd(kk, buf):
            b0 = buf*5
            a("ds_read_b128 %s, v%d" % (ar(fa(b0+4), 4), vT+4+kk))
            for dt in range(4):
                a("ds_read_b64_tr_b16 %s, v%d offset:%d" % (ar(fa(b0+dt), 2), vT+dt, kk*4096))
                a("ds_read_b64_tr_b16 %s, v%d offset:%d" % (ar(fa(b0+dt)+2, 2), vT+dt, kk*4096+1024))
        rd(0, 0)
        for kk in range(4):
            buf = kk & 1
            if kk < 3:
                rd(kk+1, buf ^ 1)
                a("s_waitcnt lgkmcnt(9)")
            else:
                a("s_waitcnt lgkmcnt(0)")
            for dt in range(4):
                c = "0" if (j == 0 and kk == 0) else vr(vO+16*dt, 16)
                a("v_mfma_f32_32x32x16_bf16 %s, %s, %s, %s" % (vr(vO+16*dt, 16), ar(fa(buf*5+dt), 4), ar(fa(buf*5+4), 4), c))
        step_end(items)
    a.nop(12)
    stamp()
    for dt in range(4):
        for i in range(0, 16, 2):
            t = vt0 + (i//2) % 2
            a("v_cvt_pk_bf16_f32 v%d, v%d, v%d" % (t, vO+16*dt+i, vO+16*dt+i+1))
            a("v_accvgpr_write_b32 a%d, v%d" % (aQ + 8*dt + i//2, t))
    a.nop(2)

    vT2 = 248
    def s_block(q):
        b = vS + 64*(q & 1)
        items = [('K', 2*q), ('K', 2*q+1)]
        step_begin(items)
        for c, base in ((0, vT), (1, vT2)):
            kb = slot_of[items[c]]*SLOT
            for ks in range(8): a("v_add_u32 v%d, %d, v%d" % (base+ks, kb, vKr+ks))
        seq = [(c, t, ks) for c in range(2) for t in range(2) for ks in range(8)]
        NB = 8; PF = 5
        def rd(n):
            c, t, ks = seq[n]
            return "ds_read_b128 %s, v%d offset:%d" % (ar(fa(n % NB), 4), (vT, vT2)[c]+ks, t*8192)
        for n in range(PF): a(rd(n))
        groups = []
        for n, (c, t, ks) in enumerate(seq):
            g = []
            if n + PF < len(seq):
                g.append(rd(n+PF)); g.append("s_waitcnt lgkmcnt(%d)" % PF)
            else:
                g.append("s_waitcnt lgkmcnt(%d)" % (len(seq)-1-n))
            T = 2*c + t
            cc = "0" if ks == 0 else vr(b+16*T, 16)
            g.append("v_mfma_f32_32x32x16_bf16 %s, %s, %s, %s" % (vr(b+16*T, 16), ar(fa(n % NB), 4), ar(aQ+4*ks, 4), cc))
            groups.append(g)
        return groups, items
    def pv_block(q):
        b = vS + 64*(q & 1)
        items = [('V', 2*q), ('V', 2*q+1)]
        step_begin(items)
        for c, base in ((0, vT), (1, vT2)):
            vb = slot_of[items[c]]*SLOT
            for dt in range(4): a("v_add_u32 v%d, %d, v%d" % (base+dt, vb, vTr+dt))
        seq = [(c, k4, dt) for c in range(2) for k4 in range(4) for dt in range(4)]
        NB = 8; PF = 5
        def rd(n):
            c, k4, dt = seq[n]
            return ["ds_read_b64_tr_b16 %s, v%d offset:%d" % (ar(fa(n % NB), 2), (vT, vT2)[c]+dt, k4*4096),
                    "ds_read_b64_tr_b16 %s, v%d offset:%d" % (ar(fa(n % NB)+2, 2), (vT, vT2)[c]+dt, k4*4096+1024)]
        for n in range(PF):
            for x in rd(n): a(x)
        groups = []
        for n, (c, k4, dt) in enumerate(seq):
            g = []
            if n + PF < len(seq):
                g += rd(n+PF); g.append("s_waitcnt lgkmcnt(%d)" % (2*PF))
            else:
                g.append("s_waitcnt lgkmcnt(%d)" % (2*(len(seq)-1-n)))
            kst = 4*c + k4
            T, jj = kst // 2, kst % 2
            cc = "0" if (q == 0 and kst == 0) else vr(vO+16*dt, 16)
            g.append("v_mfma_f32_32x32x16_bf16 %s, %s, %s, %s" % (vr(vO+16*dt, 16), ar(fa(n % NB), 4), vr(b+16*T+4*jj, 4), cc))
            groups.append(g)
        return groups, items
    vL2 = 0
    def sm_stream(q):
        b = vS + 64*(q & 1)
        v = []
        pm = [vt0, vt1, vt2, vt3]
        for T in range(4):
            r = b + 16*T
            v.append("v_max3_f32 v%d, v%d, v%d, v%d" % (pm[T], r, r+1, r+2))
            for i in range(3, 15, 2):
                v.append("v_max3_f32 v%d, v%d, v%d, v%d" % (pm[T], pm[T], r+i, r+i+1))
            v.append("v_max_f32 v%d, v%d, v%d" % (pm[T], pm[T], r+15))
        v.append("v_max3_f32 v%d, v%d, v%d, v%d" % (vt0, vt0, vt1, vt2))
        v.append("v_max_f32 v%d, v%d, v%d" % (vt0, vt0, vt3))
        v.append("v_mov_b32 v%d, v%d" % (vt1, vt0))
        v.append("s_nop 1")
        v.append("v_permlane32_swap_b32 v%d, v%d" % (vt0, vt1))
        v.append("v_max_f32 v%d, v%d, v%d" % (vt0, vt0, vt1))
        if q == 0:
            v.append("v_mov_b32 v%d, v%d" % (vM, vt0))
            v.append("v_mov_b32 v%d, 0" % vLsum)
            v.append("v_mov_b32 v%d, 0" % vL2)
        else:
            v.append("v_max_f32 v%d, v%d, v%d" % (vt0, vt0, vM))
            v.append("v_sub_f32 v%d, v%d, v%d" % (vt1, vM, vt0))
            v.append("v_mul_f32 v%d, s%d, v%d" % (vt1, sC, vt1))
            v.append("v_exp_f32 v%d, v%d" % (vF, vt1))
            v.append("v_mov_b32 v%d, v%d" % (vM, vt0))
            v.append("s_nop 0")
            v.append("v_mul_f32 v%d, v%d, v%d" % (vLsum, vLsum, vF))
            v.append("v_mul_f32 v%d, v%d, v%d" % (vL2, vL2, vF))
        v.append("v_mul_f32 v%d, s%d, v%d" % (vMC, sC, vM))
        for T in range(4):
            r = b + 16*T
            for i in range(16):
                v.append("v_fma_f32 v%d, v%d, s%d, -v%d" % (r+i, r+i, sC, vMC))
            for i in range(16):
                v.append("v_exp_f32 v%d, v%d" % (r+i, r+i))
            v.append("s_nop 0")
            for i in range(16):
                l = vLsum if i % 2 == 0 else vL2
                v.append("v_add_f32 v%d, v%d, v%d" % (l, l, r+i))
            for i in range(8):
                v.append("v_cvt_pk_bf16_f32 v%d, v%d, v%d" % (r+i, r+2*i, r+2*i+1))
        return v
    def rescale_stream():
        return ["s_nop 7", "s_nop 7"] + ["v_mul_f32 v%d, v%d, v%d" % (vO+i, vO+i, vF) for i in range(64)]
    def emit(groups, valu):
        n = len(groups)
        per = -(-len(valu) // n) if valu else 0
        k = 0
        for g in groups:
            for x in g: a(x)
            for x in valu[k:k+per]: a(x)
            k += per
        for x in valu[k:]: a(x)
    def block(name, blk, valu):
        a.c(name)
        groups, items = blk
        emit(groups, valu)
        step_end(items)
        stamp()
    allowJ[0] = False
    block("S0", s_block(0), [])
    block("S1+SM0", s_block(1), sm_stream(0))
    block("PV0+SM1", pv_block(0), sm_stream(1))
    block("S2+rescale", s_block(2), rescale_stream())
    block("PV1+SM2", pv_block(1), sm_stream(2))
    block("S3+rescale", s_block(3), rescale_stream())
    allowJ[0] = True
    block("PV2+SM3", pv_block(2), sm_stream(3))
    for x in rescale_stream(): a(x)
    a.nop(2)
    block("PV3", pv_block(3), [])
    a.nop(12)
    a("v_add_f32 v%d, v%d, v%d" % (vLsum, vLsum, vL2))
    a("v_mov_b32 v%d, v%d" % (vt1, vLsum))
    a("s_nop 1")
    a("v_permlane32_swap_b32 v%d, v%d" % (vLsum, vt1))
    a("v_add_f32 v%d, v%d, v%d" % (vLsum, vLsum, vt1))
    a("v_rcp_f32 v%d, v%d" % (vF, vLsum))
    a("s_nop 0")
    for dt in range(4):
        for jj in range(2):
            src = vO + 16*dt + 8*jj
            base = vS + 16*dt + 8*jj
            for i in range(8):
                a("v_mul_f32 v%d, v%d, v%d" % (src+i, src+i, vF))
            for i in range(4):
                a("v_cvt_pk_bf16_f32 v%d, v%d, v%d" % (base+i, src+2*i, src+2*i+1))
            a("buffer_store_dwordx4 %s, v%d, s[%d:%d], 0 offen offset:%d %s" % (vr(base, 4), vOst, sO, sO+3, dt*1024+jj*512, "nt" if "ntst" in OPT else ""))
    a.mute = False
    a("s_waitcnt vmcnt(8)")
    a("v_lshrrev_b32 v%d, 4, v%d" % (vt1, vL))
    a("v_and_b32 v%d, 15, v%d" % (vt2, vL))
    a("v_lshrrev_b32 v%d, 2, v%d" % (vt3, vt2))
    a("v_lshl_add_u32 v%d, v%d, 3, v%d" % (vt1, vt1, vt3))
    a("s_movk_i32 s%d, 160" % sT2)
    a("v_mul_lo_u32 v%d, v%d, s%d" % (vt1, vt1, sT2))
    a("v_and_b32 v%d, 3, v%d" % (vt2, vt2))
    a("v_lshl_add_u32 v%d, v%d, 3, v%d" % (vt1, vt2, vt1))
    a("v_add_u32 v%d, s%d, v%d" % (vt1, sJl, vt1))
    a("s_lshl_b32 s%d, s2, 2" % sT0); a("s_add_u32 s%d, s%d, s%d" % (sT0, sT0, sWv))
    a("s_and_b32 s%d, s%d, 7" % (sT1, sT0)); a("s_lshr_b32 s%d, s%d, 3" % (sT0, sT0))
    a("s_mul_i32 s%d, s%d, %d" % (sT1, sT1, 5*131072)); a("s_lshl_b32 s%d, s%d, 10" % (sT0, sT0))
    a("s_add_u32 s%d, s%d, s%d" % (sT0, sT0, sT1)); a("s_add_u32 s%d, s%d, %d" % (sT0, sT0, OFF_WOT))
    a("v_lshlrev_b32 v%d, 4, v%d" % (vt2, vL))
    for nt in range(5):
        a("ds_read_b64_tr_b16 %s, v%d offset:%d" % (vr(vFB+4*nt, 2), vt1, nt*32))
        a("ds_read_b64_tr_b16 %s, v%d offset:%d" % (vr(vFB+4*nt+2, 2), vt1, nt*32+640))
    a("s_waitcnt lgkmcnt(0)")
    for nt in range(5):
        a("s_add_u32 s%d, s%d, %d" % (sT1, sT0, nt*131072))
        a("buffer_store_dwordx4 %s, v%d, s[%d:%d], s%d offen %s" % (vr(vFB+4*nt, 4), vt2, sO, sO+3, sT1, "nt" if "ntst" in OPT else ""))
    stamp()
    stamp(True)
    a.lab("k1_done")
    a("s_endpgm")

def gen_k2(a):
    nst = [0]
    def stamp(real=False):
        if "stamp2" not in OPT: return
        a("s_memrealtime s[60:61]" if real else "s_memtime s[60:61]")
        a("s_waitcnt lgkmcnt(0)")
        a("v_mov_b32 v6, s60")
        a("s_lshl_b32 s62, s2, 8")
        a("s_add_u32 s62, s62, %d" % (nst[0]*4))
        a("s_mov_b64 s[64:65], exec")
        a("s_mov_b64 exec, 1")
        a("v_mov_b32 v7, 0")
        a("buffer_store_dword v6, v7, s[68:71], s62 offen")
        a("s_mov_b64 exec, s[64:65]")
        nst[0] += 1
    sWS, sP, sOut = 8, 12, 40
    sB, sNB, sKS, sWv = 16, 17, 18, 19
    sT0, sT1, sT2 = 20, 21, 22
    sRot = 23
    sA = 24
    sBq = 32
    v0off, v1off = 1, 2
    vF = 8
    DEPTH = 4
    a.lab("k2_kernel")
    a("s_cmp_ge_u32 s2, 256")
    a("s_cbranch_scc1 k2_done")
    a("s_load_dwordx2 s[4:5], s[0:1], 56")
    a("s_load_dwordx4 s[44:47], s[0:1], 32")
    a("s_load_dwordx2 s[48:49], s[0:1], 48")
    a("v_and_b32 v3, 63, v0")
    a("v_lshrrev_b32 v4, 6, v0")
    a("s_nop 0")
    a("v_readfirstlane_b32 s%d, v4" % sWv)
    a("s_and_b32 s%d, s2, 3" % sKS)
    a("s_lshr_b32 s%d, s2, 2" % sT0); a("s_and_b32 s%d, s%d, 1" % (sT0, sT0)); a("s_lshl_b32 s%d, s%d, 2" % (sT0, sT0))
    a("s_lshr_b32 s%d, s2, 3" % sT1); a("s_and_b32 s%d, s%d, 3" % (sB, sT1))
    a("s_lshl_b32 s%d, s%d, 1" % (sRot, sB))
    a("s_add_u32 s%d, s%d, s%d" % (sB, sB, sT0))
    a("s_lshr_b32 s%d, s2, 5" % sNB)
    a("s_add_u32 s%d, s%d, s%d" % (sRot, sRot, sNB))
    a("v_lshlrev_b32 v%d, 4, v3" % v0off)
    a("s_waitcnt lgkmcnt(0)")
    a("s_mov_b32 s%d, s4" % sWS); a("s_and_b32 s%d, s5, 0xffff" % (sWS+1)); a("s_mov_b32 s%d, %d" % (sWS+2, OFF_PART)); a("s_mov_b32 s%d, 0x20000" % (sWS+3))
    a("s_add_u32 s%d, s4, %d" % (sP, OFF_PART)); a("s_addc_u32 s%d, s5, 0" % (sP+1)); a("s_and_b32 s%d, s%d, 0xffff" % (sP+1, sP+1))
    a("s_mov_b32 s%d, %d" % (sP+2, 4*64*35*1024)); a("s_mov_b32 s%d, 0x20000" % (sP+3))
    a("s_mov_b32 s%d, s46" % sOut); a("s_and_b32 s%d, s47, 0xffff" % (sOut+1)); a("s_mov_b32 s%d, %d" % (sOut+2, 896*640*2)); a("s_mov_b32 s%d, 0x20000" % (sOut+3))
    a("s_mov_b32 s52, s48"); a("s_and_b32 s53, s49, 0xffff"); a("s_mov_b32 s54, 256"); a("s_mov_b32 s55, 0x20000")
    a("s_add_u32 s68, s4, %d" % OFF_DBG); a("s_addc_u32 s69, s5, 0"); a("s_and_b32 s69, s69, 0xffff"); a("s_mov_b32 s70, 65536"); a("s_mov_b32 s71, 0x20000")
    stamp(True); stamp()
    a("s_lshl_b32 s%d, s%d, 5" % (sT0, sKS)); a("s_lshl_b32 s%d, s%d, 3" % (sT1, sWv)); a("s_add_u32 s%d, s%d, s%d" % (sT0, sT0, sT1))
    a("s_lshl_b32 s%d, s%d, 10" % (sT0, sT0))
    a("s_mul_i32 s%d, s%d, %d" % (sT1, sNB, 5*131072)); a("s_add_u32 s%d, s%d, s%d" % (sT1, sT1, sT0)); a("s_add_u32 s%d, s%d, %d" % (sT1, sT1, OFF_WOT))
    for n in range(5): a("s_add_u32 s%d, s%d, %d" % (sA+n, sT1, n*131072))
    a("s_mul_i32 s%d, s%d, %d" % (sT1, sB, 7*131072)); a("s_add_u32 s%d, s%d, s%d" % (sT1, sT1, sT0))
    for r in range(7): a("s_add_u32 s%d, s%d, %d" % (sBq+r, sT1, r*131072))
    def ld(k):
        buf = k % DEPTH
        a("s_add_u32 s%d, s%d, %d" % (sT2, sRot, k)); a("s_and_b32 s%d, s%d, 7" % (sT2, sT2)); a("s_lshl_b32 s%d, s%d, 10" % (sT2, sT2))
        a("v_add_u32 v%d, s%d, v%d" % (v1off, sT2, v0off))
        for f in range(12):
            sb = sA+f if f < 5 else sBq+f-5
            a("buffer_load_dwordx4 %s, v%d, s[%d:%d], s%d offen %s" % (vr(vF+(buf*12+f)*4, 4), v1off, sWS, sWS+3, sb, "nt" if "ntk2" in OPT else ""))
    for k in range(DEPTH): ld(k)
    for k in range(8):
        buf = k % DEPTH
        rem = min(8, k+DEPTH) - (k+1)
        a("s_waitcnt vmcnt(%d)" % (12*rem))
        if k in (0, 3): stamp()
        for n in range(5):
            for r in range(7):
                t = n*7 + r
                c = "0" if k == 0 else ar(4*t, 4)
                a("v_mfma_f32_16x16x32_bf16 %s, %s, %s, %s" % (ar(4*t, 4), vr(vF+(buf*12+n)*4, 4), vr(vF+(buf*12+5+r)*4, 4), c))
        if k + DEPTH < 8: ld(k+DEPTH)
    a.nop(10)
    stamp()
    a("s_mul_i32 s%d, s%d, %d" % (sT0, sWv, 35*1024))
    a("v_add_u32 v4, s%d, v%d" % (sT0, v0off))
    for t in range(35):
        a("ds_write_b128 v4, %s offset:%d" % (ar(4*t, 4), t*1024))
    a("s_waitcnt lgkmcnt(0)")
    a("s_barrier")
    sBN = 56
    a("s_lshl_b32 s%d, s%d, 3" % (sBN, sB)); a("s_add_u32 s%d, s%d, s%d" % (sBN, sBN, sNB))
    a("s_lshl_b32 s%d, s%d, 10" % (sT1, sWv))
    a("s_mul_i32 s%d, s%d, %d" % (sT0, sBN, 35*1024)); a("s_add_u32 s%d, s%d, s%d" % (sT0, sT0, sT1))
    sPB = 57
    a("s_mov_b32 s%d, s%d" % (sPB, sT0))
    a("s_mul_i32 s%d, s%d, %d" % (sT2, sKS, 64*35*1024)); a("s_add_u32 s%d, s%d, s%d" % (sT0, sT0, sT2))
    a("v_add_u32 v4, s%d, v%d" % (sT1, v0off))
    a("v_add_u32 v5, %d, v4" % (35*1024))
    a("v_add_u32 v6, %d, v4" % (2*35*1024))
    a("v_add_u32 v7, %d, v4" % (3*35*1024))
    for i in range(9):
        o = i*4096
        if i == 8:
            a("s_cmp_ge_u32 s%d, 3" % sWv)
            a("s_cbranch_scc1 k2_st_done")
        a("ds_read_b128 v[8:11], v4 offset:%d" % o)
        a("ds_read_b128 v[12:15], v5 offset:%d" % o)
        a("ds_read_b128 v[16:19], v6 offset:%d" % o)
        a("ds_read_b128 v[20:23], v7 offset:%d" % o)
        a("s_waitcnt lgkmcnt(0)")
        for e in range(4):
            a("v_add_f32 v%d, v%d, v%d" % (8+e, 8+e, 12+e))
            a("v_add_f32 v%d, v%d, v%d" % (16+e, 16+e, 20+e))
        d = 24 + 4*i
        for e in range(4):
            a("v_add_f32 v%d, v%d, v%d" % (d+e, 8+e, 16+e))
        a("s_add_u32 s%d, s%d, %d" % (sT1, sT0, o))
        a("buffer_store_dwordx4 v[%d:%d], v%d, s[%d:%d], s%d offen sc0 sc1" % (d, d+3, v0off, sP, sP+3, sT1))
    a.lab("k2_st_done")
    stamp()
    a("s_waitcnt vmcnt(0)")
    a("s_barrier")
    stamp()
    a("s_cmp_lg_u32 s%d, 0" % sWv)
    a("s_cbranch_scc1 k2_wait")
    a("s_lshl_b32 s%d, s%d, 2" % (sT1, sBN))
    a("v_mov_b32 v4, 1")
    a("v_mov_b32 v5, s%d" % sT1)
    a("s_mov_b64 s[58:59], exec")
    a("s_mov_b64 exec, 1")
    a("buffer_atomic_add v4, v5, s[52:55], 0 offen sc0 sc1")
    a("s_waitcnt vmcnt(0)")
    a("v_mov_b32 v5, 0")
    a("ds_write_b32 v5, v4")
    a("s_waitcnt lgkmcnt(0)")
    a("s_mov_b64 exec, s[58:59]")
    a.lab("k2_wait")
    a("s_barrier")
    a("v_mov_b32 v5, 0")
    a("ds_read_b32 v4, v5")
    a("s_waitcnt lgkmcnt(0)")
    a("s_nop 0")
    a("v_readfirstlane_b32 s%d, v4" % sT1)
    a("s_nop 3")
    stamp()
    a("s_cmp_lg_u32 s%d, 3" % sT1)
    a("s_cbranch_scc1 k2_done")
    a("v_and_b32 v4, 15, v3")
    a("s_mul_i32 s%d, s%d, 112" % (sT1, sB))
    a("v_add_u32 v4, s%d, v4" % sT1)
    a("s_movk_i32 s%d, 1280" % sT1)
    a("v_mul_lo_u32 v4, v4, s%d" % sT1)
    a("v_lshrrev_b32 v5, 4, v3")
    a("v_lshl_add_u32 v4, v5, 3, v4")
    a("s_mul_i32 s%d, s%d, 160" % (sT1, sNB))
    a("v_add_u32 v4, s%d, v4" % sT1)
    def tile_loads(i):
        for ks in range(4):
            a("s_add_u32 s%d, s%d, %d" % (sT1, sPB, ks*64*35*1024 + i*4096))
            d = 64 + (i % 3)*16 + 4*ks
            a("buffer_load_dwordx4 v[%d:%d], v%d, s[%d:%d], s%d offen sc0 sc1" % (d, d+3, v0off, sP, sP+3, sT1))
    def tile_fin(i):
        d = 64 + (i % 3)*16
        a("s_add_u32 s%d, s%d, %d" % (sT0, sWv, 4*i))
        a("s_mul_i32 s%d, s%d, 37" % (sT1, sT0)); a("s_lshr_b32 s%d, s%d, 8" % (sT1, sT1))
        a("s_mul_i32 s%d, s%d, 7" % (sT2, sT1)); a("s_sub_u32 s%d, s%d, s%d" % (sT2, sT0, sT2))
        a("s_mul_i32 s%d, s%d, %d" % (sT2, sT2, 16*1280)); a("s_lshl_b32 s%d, s%d, 5" % (sT1, sT1)); a("s_add_u32 s%d, s%d, s%d" % (sT1, sT1, sT2))
        for e in range(4):
            a("v_add_f32 v%d, v%d, v%d" % (d+e, d+e, d+4+e))
            a("v_add_f32 v%d, v%d, v%d" % (d+8+e, d+8+e, d+12+e))
        for e in range(4):
            a("v_add_f32 v%d, v%d, v%d" % (d+e, d+e, d+8+e))
        a("v_cvt_pk_bf16_f32 v%d, v%d, v%d" % (60, d, d+1))
        a("v_cvt_pk_bf16_f32 v%d, v%d, v%d" % (61, d+2, d+3))
        a("buffer_store_dwordx2 v[60:61], v4, s[%d:%d], s%d offen" % (sOut, sOut+3, sT1))
        a("s_nop 1")
    tile_loads(0); tile_loads(1)
    for i in range(8):
        if i + 2 < 8:
            tile_loads(i+2); a("s_waitcnt vmcnt(8)")
        elif i + 1 < 8:
            a("s_waitcnt vmcnt(4)")
        else:
            a("s_waitcnt vmcnt(0)")
        tile_fin(i)
    a("s_cmp_ge_u32 s%d, 3" % sWv)
    a("s_cbranch_scc1 k2_done")
    tile_loads(8)
    a("s_waitcnt vmcnt(0)")
    tile_fin(8)
    stamp(); stamp(True)
    a.lab("k2_done")
    a("s_endpgm")

def gen_k3(a):
    a.lab("k3_kernel")
    a("s_cmp_ge_u32 s2, 560")
    a("s_cbranch_scc1 k3_done")
    a("s_load_dwordx2 s[4:5], s[0:1], 56")
    a("s_load_dwordx2 s[6:7], s[0:1], 40")
    a("v_and_b32 v3, 63, v0")
    a("v_lshrrev_b32 v4, 6, v0")
    a("s_nop 0")
    a("v_readfirstlane_b32 s16, v4")
    a("s_lshl_b32 s17, s2, 2")
    a("s_add_u32 s17, s17, s16")
    a("s_mul_i32 s18, s17, 29960"); a("s_lshr_b32 s18, s18, 20")
    a("s_mul_i32 s19, s18, 35"); a("s_sub_u32 s19, s17, s19")
    a("s_mul_i32 s20, s19, 37"); a("s_lshr_b32 s20, s20, 8")
    a("s_mul_i32 s21, s20, 7"); a("s_sub_u32 s21, s19, s21")
    a("s_lshr_b32 s22, s18, 3")
    a("s_and_b32 s23, s18, 7")
    a("s_waitcnt lgkmcnt(0)")
    a("s_add_u32 s8, s4, %d" % OFF_PART); a("s_addc_u32 s9, s5, 0"); a("s_and_b32 s9, s9, 0xffff")
    a("s_mov_b32 s10, %d" % (4*64*35*1024)); a("s_mov_b32 s11, 0x20000")
    a("s_mov_b32 s12, s6"); a("s_and_b32 s13, s7, 0xffff"); a("s_mov_b32 s14, %d" % (896*640*2)); a("s_mov_b32 s15, 0x20000")
    a("v_lshlrev_b32 v1, 4, v3")
    a("s_lshl_b32 s24, s17, 10")
    for ks in range(4):
        a("s_add_u32 s25, s24, %d" % (ks*64*35*1024))
        a("buffer_load_dwordx4 v[%d:%d], v1, s[8:11], s25 offen" % (8+4*ks, 11+4*ks))
    a("s_mul_i32 s26, s22, 112"); a("s_lshl_b32 s27, s21, 4"); a("s_add_u32 s26, s26, s27")
    a("s_mul_i32 s27, s23, 80"); a("s_lshl_b32 s28, s20, 4"); a("s_add_u32 s27, s27, s28")
    a("v_and_b32 v4, 15, v3")
    a("v_add_u32 v4, s26, v4")
    a("s_mov_b32 s28, 1280")
    a("v_mul_lo_u32 v4, v4, s28")
    a("v_lshrrev_b32 v5, 4, v3")
    a("v_lshlrev_b32 v5, 3, v5")
    a("v_add_u32 v4, v4, v5")
    a("s_lshl_b32 s27, s27, 1")
    a("v_add_u32 v4, s27, v4")
    a("s_waitcnt vmcnt(0)")
    for e in range(4):
        a("v_add_f32 v%d, v%d, v%d" % (8+e, 8+e, 12+e))
        a("v_add_f32 v%d, v%d, v%d" % (16+e, 16+e, 20+e))
    for e in range(4):
        a("v_add_f32 v%d, v%d, v%d" % (8+e, 8+e, 16+e))
    a("v_cvt_pk_bf16_f32 v24, v8, v9")
    a("v_cvt_pk_bf16_f32 v25, v10, v11")
    a("buffer_store_dwordx2 v[24:25], v4, s[12:15], 0 offen")
    a.lab("k3_done")
    a("s_endpgm")

HDR = """; Kernarg layout (64 bytes): x, k_cache, v_cache, wq, wo, d_out, d_debug, d_ws
; @launch kernel=k1_kernel grid=(256,1,1) block=(256,1,1) lds=163840
; @launch kernel=k2_kernel grid=(256,1,1) block=(256,1,1) lds=143360
.amdgcn_target "amdgcn-amd-amdhsa--gfx950"
.text
"""
def kd(name, vgpr, sgpr, acc):
    return """.amdhsa_kernel %s
  .amdhsa_next_free_vgpr %d
  .amdhsa_next_free_sgpr %d
  .amdhsa_accum_offset %d
  .amdhsa_group_segment_fixed_size 0
  .amdhsa_kernarg_size 64
  .amdhsa_user_sgpr_count 2
  .amdhsa_user_sgpr_kernarg_segment_ptr 1
  .amdhsa_system_sgpr_workgroup_id_x 1
.end_amdhsa_kernel
""" % (name, vgpr, sgpr, acc)

def main():
    out = HDR
    for name, fn in (("k1_kernel", gen_k1), ("k2_kernel", gen_k2)):
        a = A(); fn(a)
        out += ".globl %s\n.p2align 8\n.type %s,@function\n" % (name, name) + a.text()
    import struct, math
    cbits = struct.unpack("<I", struct.pack("<f", 128**-0.5 * math.log2(math.e)))[0]
    out = out.replace("0x3e0293ee", "0x%08x" % cbits)
    out += '.section .rodata,"a"\n.p2align 6\n'
    out += kd("k1_kernel", 352, 102, 256)
    out += ".p2align 6\n" + kd("k2_kernel", 8+192+140, 102, 200)
    open(sys.argv[1] if len(sys.argv) > 1 else "standalone__gqa_block_cached__near_ridge.s", "w").write(out)

main()
```

```python
import sys

OFF_O    = 0
OFF_WOT  = 8 << 20
OFF_PART = 16 << 20
WS_BYTES = 268435456

class A:
    def __init__(s): s.l = []
    mute = False
    def __call__(s, x):
        if s.mute and not x.startswith(("s_waitcnt","s_barrier","buffer_load","s_add_u32","s_mov_b32 s","s_mem","v_mov_b32 v46","v_mov_b32 v45","s_lshl_b32 s62","s_mov_b64","buffer_store_dword v46")): return
        s.l.append("    " + x)
    def lab(s, x): s.l.append(x + ":")
    def c(s, x): s.l.append("    ; " + x)
    def nop(s, n):
        while n > 0:
            k = min(n, 16); s("s_nop %d" % (k - 1)); n -= k
    def text(s): return "\n".join(s.l) + "\n"

def vr(b, n): return "v[%d:%d]" % (b, b + n - 1)
def ar(b, n): return "a[%d:%d]" % (b, b + n - 1)

STAMPS = len(sys.argv) > 2 and "stamp" in sys.argv[2:]
OPT = set(sys.argv[2:])
OFF_DBG = 32 << 20
def gen_k1(a):
    nst = [0]
    def stamp(real=False):
        if not STAMPS: return
        a("s_memrealtime s[60:61]" if real else "s_memtime s[60:61]")
        a("s_waitcnt lgkmcnt(0)")
        a("v_mov_b32 v%d, s60" % 46)
        a("s_lshl_b32 s62, s2, 8")
        a("s_add_u32 s62, s62, %d" % (nst[0]*4))
        a("s_mov_b64 s[64:65], exec")
        a("s_mov_b64 exec, 1")
        a("v_mov_b32 v45, 0")
        a("buffer_store_dword v46, v45, s[68:71], s62 offen")
        a("s_mov_b64 exec, s[64:65]")
        nst[0] += 1
    SLOT = 16384
    NSLOT = 10
    sX, sK, sV, sW, sO, sWO = 8, 12, 16, 20, 24, 28
    sWv = 32
    sW4k = 33
    sB, sH = 34, 35
    sT0, sT1, sT2, sT3 = 36, 37, 38, 39
    sXoff = 40
    sC = 41
    sWoff = 42
    sRot = 52
    sJl = 53
    vTid = 0
    vL = 1
    vKd = 2
    vVd = 6
    vWd = 7
    vXd = 11
    vXr = 15
    vTr = 19
    vKr = 23
    vT = 31
    vM, vLsum, vMC, vF = 39, 40, 41, 42
    vt0, vt1, vt2, vt3 = 43, 44, 45, 46
    vOst = 47
    vO = 48
    vS = 112
    vQ = 240
    vFB = 112
    aQ = 0
    aF = 32

    a.lab("k1_kernel")
    a("s_cmp_ge_u32 s2, 256")
    a("s_cbranch_scc1 k1_done")
    a("s_load_dwordx4 s[4:7], s[0:1], 0")
    a("s_load_dwordx4 s[44:47], s[0:1], 16")
    a("s_load_dwordx2 s[48:49], s[0:1], 32")
    a("s_load_dwordx2 s[50:51], s[0:1], 56")
    a("v_and_b32 v%d, 63, v0" % vL)
    a("v_lshrrev_b32 v%d, 6, v0" % vt0)
    a("s_nop 0")
    a("v_readfirstlane_b32 s%d, v%d" % (sWv, vt0))
    a("s_lshr_b32 s%d, s2, 5" % sB)
    a("s_and_b32 s%d, s2, 7" % sT0)
    a("s_lshl_b32 s%d, s%d, 2" % (sT0, sT0))
    a("s_lshr_b32 s%d, s2, 3" % sT1)
    a("s_and_b32 s%d, s%d, 3" % (sT1, sT1))
    a("s_add_u32 s%d, s%d, s%d" % (sH, sT0, sT1))
    if "mapB" in OPT:
        a("s_and_b32 s%d, s2, 7" % sB)
        a("s_lshr_b32 s%d, s2, 3" % sH)
    a("s_lshl_b32 s%d, s%d, 12" % (sW4k, sWv))
    a("s_mov_b32 s%d, 0x3e0293ee" % sC)
    a("s_waitcnt lgkmcnt(0)")
    a("s_mov_b32 s%d, s4" % sX); a("s_and_b32 s%d, s5, 0xffff" % (sX+1)); a("s_mov_b32 s%d, %d" % (sX+2, 8*112*640*2)); a("s_mov_b32 s%d, 0x20000" % (sX+3))
    a("s_lshl_b32 s%d, s%d, 5" % (sT0, sB)); a("s_add_u32 s%d, s%d, s%d" % (sT0, sT0, sH))
    a("s_lshl_b32 s%d, s%d, 17" % (sT1, sT0))
    a("s_add_u32 s%d, s6, s%d" % (sK, sT1)); a("s_addc_u32 s%d, s7, 0" % (sK+1)); a("s_and_b32 s%d, s%d, 0xffff" % (sK+1, sK+1))
    a("s_mov_b32 s%d, 131072" % (sK+2)); a("s_mov_b32 s%d, 0x20000" % (sK+3))
    a("s_add_u32 s%d, s44, s%d" % (sV, sT1)); a("s_addc_u32 s%d, s45, 0" % (sV+1)); a("s_and_b32 s%d, s%d, 0xffff" % (sV+1, sV+1))
    a("s_mov_b32 s%d, 131072" % (sV+2)); a("s_mov_b32 s%d, 0x20000" % (sV+3))
    a("s_mov_b32 s%d, s46" % sW); a("s_and_b32 s%d, s47, 0xffff" % (sW+1)); a("s_mov_b32 s%d, %d" % (sW+2, 640*4096*2)); a("s_mov_b32 s%d, 0x20000" % (sW+3))
    a("s_mov_b32 s%d, s50" % sO); a("s_and_b32 s%d, s51, 0xffff" % (sO+1)); a("s_mov_b32 s%d, %d" % (sO+2, OFF_PART)); a("s_mov_b32 s%d, 0x20000" % (sO+3))
    a("s_mov_b32 s%d, s48" % sWO); a("s_and_b32 s%d, s49, 0xffff" % (sWO+1)); a("s_mov_b32 s%d, %d" % (sWO+2, 4096*640*2)); a("s_mov_b32 s%d, 0x20000" % (sWO+3))
    a("s_add_u32 s68, s50, %d" % OFF_DBG); a("s_addc_u32 s69, s51, 0"); a("s_and_b32 s69, s69, 0xffff"); a("s_mov_b32 s70, 65536"); a("s_mov_b32 s71, 0x20000")
    a("s_mul_i32 s%d, s%d, %d" % (sXoff, sB, 112*1280))
    a("s_lshl_b32 s%d, s%d, 8" % (sWoff, sH))
    a("s_and_b32 s%d, s%d, 3" % (sT0, sH)); a("s_mul_i32 s%d, s%d, 3" % (sT0, sT0)); a("s_add_u32 s%d, s%d, s%d" % (sRot, sT0, sB))
    a("s_cmp_ge_u32 s%d, 10" % sRot); a("s_cselect_b32 s%d, 10, 0" % sT0); a("s_sub_u32 s%d, s%d, s%d" % (sRot, sRot, sT0))
    if "norot" in OPT: a("s_mov_b32 s%d, 0" % sRot)
    if "fakeW" in OPT: a("s_mul_i32 s%d, s%d, %d" % (sWoff, sH, 163840))

    l16 = vt0; lhi = vt1
    a("v_and_b32 v%d, 15, v%d" % (l16, vL))
    a("v_lshrrev_b32 v%d, 4, v%d" % (lhi, vL))
    for i in range(4):
        a("v_add_u32 v%d, %d, v%d" % (vt2, 4*i, lhi))
        a("v_xor_b32 v%d, v%d, v%d" % (vt2, vt2, l16))
        a("v_lshlrev_b32 v%d, 4, v%d" % (vt2, vt2))
        a("v_lshl_add_u32 v%d, v%d, 8, v%d" % (vt2, lhi, vt2))
        a("v_add_u32 v%d, %d, v%d" % (vKd+i, 1024*i, vt2))
        a("v_add_u32 v%d, s%d, v%d" % (vKd+i, sW4k, vKd+i))
    a("v_lshlrev_b32 v%d, 2, v%d" % (vt2, lhi))
    a("v_xor_b32 v%d, v%d, v%d" % (vt2, vt2, l16))
    a("v_lshlrev_b32 v%d, 4, v%d" % (vt2, vt2))
    a("v_lshl_add_u32 v%d, v%d, 8, v%d" % (vVd, lhi, vt2))
    a("v_add_u32 v%d, s%d, v%d" % (vVd, sW4k, vVd))
    a("s_lshl_b32 s%d, s%d, 17" % (sT0, sWv))
    if "fakeW" in OPT: a("s_lshl_b32 s%d, s%d, 12" % (sT0, sWv))
    for i in range(4):
        a("v_add_u32 v%d, %d, v%d" % (vt3, 4*i, lhi))
        a("v_lshl_add_u32 v%d, v%d, %d, v%d" % (vWd+i, vt3, 8 if "fakeW" in OPT else 13, vt2))
        a("v_add_u32 v%d, s%d, v%d" % (vWd+i, sT0, vWd+i))
    a("v_and_b32 v%d, 7, v%d" % (vt2, vL))
    a("v_lshrrev_b32 v%d, 3, v%d" % (vt3, vL))
    a("s_mul_i32 s%d, s%d, %d" % (sT0, sWv, 32*1280))
    a("s_mov_b32 s%d, 1280" % sT1)
    for i in range(4):
        a("v_add_u32 v%d, %d, v%d" % (vT, 4*i, lhi))
        a("v_and_b32 v%d, 7, v%d" % (vT, vT))
        a("v_xor_b32 v%d, v%d, v%d" % (vT, vT, vt2))
        a("v_lshlrev_b32 v%d, 4, v%d" % (vT, vT))
        a("v_add_u32 v%d, %d, v%d" % (vT+1, 8*i, vt3))
        a("v_mul_lo_u32 v%d, v%d, s%d" % (vT+1, vT+1, sT1))
        a("v_add_u32 v%d, v%d, v%d" % (vXd+i, vT, vT+1))
        a("v_add_u32 v%d, s%d, v%d" % (vXd+i, sT0, vXd+i))
        a("v_mov_b32 v%d, 0x7fff0000" % (vT+2))
        a("v_cmp_gt_u32 vcc, %d, v%d" % (112*1280, vXd+i))
        a("s_nop 1")
        a("v_cndmask_b32 v%d, v%d, v%d, vcc" % (vXd+i, vT+2, vXd+i))
    l31 = vt2; g = vt3
    a("v_and_b32 v%d, 31, v%d" % (l31, vL))
    a("v_lshrrev_b32 v%d, 5, v%d" % (g, vL))
    a("v_lshrrev_b32 v%d, 1, v%d" % (vT, l31))
    a("v_and_b32 v%d, 7, v%d" % (vT, vT))
    a("v_lshlrev_b32 v%d, 7, v%d" % (vT+1, l31))
    a("v_add_u32 v%d, s%d, v%d" % (vT+1, sW4k, vT+1))
    for kk in range(4):
        a("v_add_u32 v%d, %d, v%d" % (vT+2, 2*kk, g))
        a("v_xor_b32 v%d, v%d, v%d" % (vT+2, vT+2, vT))
        a("v_lshl_add_u32 v%d, v%d, 4, v%d" % (vXr+kk, vT+2, vT+1))
    def swap23(dst, src, t1, t2):
        a("v_and_b32 v%d, 0x13, v%d" % (dst, src))
        a("v_and_b32 v%d, 4, v%d" % (t1, src))
        a("v_and_b32 v%d, 8, v%d" % (t2, src))
        a("v_lshlrev_b32 v%d, 1, v%d" % (t1, t1))
        a("v_lshrrev_b32 v%d, 1, v%d" % (t2, t2))
        a("v_or3_b32 v%d, v%d, v%d, v%d" % (dst, dst, t1, t2))
    swap23(vT, l31, vT+1, vT+2)
    a("v_and_b32 v%d, 15, v%d" % (vT+1, vT))
    for ks in range(8):
        a("v_add_u32 v%d, %d, v%d" % (vT+2, 2*ks, g))
        a("v_xor_b32 v%d, v%d, v%d" % (vT+2, vT+2, vT+1))
        a("v_lshlrev_b32 v%d, 4, v%d" % (vT+2, vT+2))
        a("v_lshl_add_u32 v%d, v%d, 8, v%d" % (vKr+ks, vT, vT+2))
    r_, c_, kr, dq = vT, vT+1, vT+2, vT+3
    a("v_lshrrev_b32 v%d, 2, v%d" % (r_, l16))
    a("v_and_b32 v%d, 3, v%d" % (c_, l16))
    a("v_lshrrev_b32 v%d, 1, v%d" % (kr, lhi))
    a("v_lshl_add_u32 v%d, v%d, 3, v%d" % (kr, kr, r_))
    a("v_and_b32 v%d, 1, v%d" % (vT+4, c_))
    a("v_lshrrev_b32 v%d, 1, v%d" % (vT+5, c_))
    a("v_lshl_or_b32 v%d, v%d, 1, v%d" % (dq, vT+4, vT+5))
    a("v_and_b32 v%d, 1, v%d" % (vT+4, lhi))
    a("v_lshl_add_u32 v%d, v%d, 2, v%d" % (dq, vT+4, dq))
    a("v_lshrrev_b32 v%d, 1, v%d" % (vT+4, dq))
    a("v_and_b32 v%d, 1, v%d" % (vT+5, dq))
    a("v_lshlrev_b32 v%d, 3, v%d" % (vT+5, vT+5))
    a("v_lshl_add_u32 v%d, v%d, 8, v%d" % (vT+5, kr, vT+5))
    a("v_lshlrev_b32 v%d, 2, v%d" % (vT+6, r_))
    for dt in range(4):
        a("v_add_u32 v%d, %d, v%d" % (vT+7, 4*dt, vT+4))
        a("v_xor_b32 v%d, v%d, v%d" % (vT+7, vT+7, vT+6))
        a("v_lshl_add_u32 v%d, v%d, 4, v%d" % (vTr+dt, vT+7, vT+5))
    a("s_lshl_b32 s%d, s%d, 5" % (sT0, sWv))
    a("v_add_u32 v%d, s%d, v%d" % (vT, sT0, l31))
    a("v_lshrrev_b32 v%d, 4, v%d" % (vT+1, vT))
    a("s_mul_i32 s%d, s%d, 7" % (sT1, sB))
    a("v_add_u32 v%d, s%d, v%d" % (vT+1, sT1, vT+1))
    a("v_lshlrev_b32 v%d, 17, v%d" % (vT+1, vT+1))
    a("v_and_b32 v%d, 15, v%d" % (vT+2, vT))
    a("v_lshl_add_u32 v%d, v%d, 4, v%d" % (vT+1, vT+2, vT+1))
    a("v_lshl_add_u32 v%d, v%d, 8, v%d" % (vT+1, g, vT+1))
    a("s_lshl_b32 s%d, s%d, 12" % (sT1, sH))
    a("v_add_u32 v%d, s%d, v%d" % (vT+1, sT1, vT+1))
    a("v_mov_b32 v%d, 0x7fff0000" % (vT+2))
    a("v_cmp_gt_u32 vcc, 112, v%d" % vT)
    a("s_nop 1")
    a("v_cndmask_b32 v%d, v%d, v%d, vcc" % (vOst, vT+2, vT+1))

    free = list(range(NSLOT))
    slot_of = {}
    issued = []
    cnts = []
    def issue(item):
        s = free.pop(0)
        slot_of[item] = s
        kind, idx = item
        for i in range(4):
            a("s_add_u32 m0, s%d, %d" % (sW4k, s*SLOT + i*1024))
            if kind == 'K':
                a("s_mov_b32 s%d, %d" % (sT0, idx*SLOT))
                a("buffer_load_dwordx4 v%d, s[%d:%d], s%d offen %s lds" % (vKd+i, sK, sK+3, sT0, "" if "nontkv" in OPT else "nt"))
            elif kind == 'V':
                a("s_mov_b32 s%d, %d" % (sT0, idx*SLOT + i*1024))
                a("buffer_load_dwordx4 v%d, s[%d:%d], s%d offen %s lds" % (vVd, sV, sV+3, sT0, "" if "nontkv" in OPT else "nt"))
            elif kind == 'W':
                if i == 0:
                    a("s_lshl_b32 s%d, s%d, 19" % (sT1, sRot)); a("s_add_u32 s%d, s%d, s%d" % (sT1, sT1, sWoff))
                a("s_mov_b32 s%d, s%d" % (sT0, sT1))
                a("buffer_load_dwordx4 v%d, s[%d:%d], s%d offen %s lds" % (vWd+i, sW, sW+3, sT0, "nt" if "ntW" in OPT else ""))
            elif kind == 'X':
                if i == 0:
                    a("s_lshl_b32 s%d, s%d, 7" % (sT1, sRot)); a("s_add_u32 s%d, s%d, s%d" % (sT1, sT1, sXoff))
                a("s_mov_b32 s%d, s%d" % (sT0, sT1))
                a("buffer_load_dwordx4 v%d, s[%d:%d], s%d offen %s lds" % (vXd+i, sX, sX+3, sT0, "nt" if "ntW" in OPT else ""))
        if kind == 'X':
            a("s_add_u32 s%d, s%d, 1" % (sRot, sRot)); a("s_cmp_ge_u32 s%d, 10" % sRot); a("s_cselect_b32 s%d, 0, s%d" % (sRot, sRot))
        issued.append(item); cnts.append(4)
        if "stampfill" in OPT and len(issued) <= 10: stamp()
    queue = []
    NQP = 0 if "noQP" in OPT else 10
    if "oldorder" in OPT:
        for j in range(min(3, NQP)): queue += [('W', j), ('X', j)]
        queue += [('K', i) for i in range(4)]
        for j in range(3, NQP): queue += [('W', j), ('X', j)]
        queue += [('V', i) for i in range(4)] + [('K', i) for i in range(4, 8)] + [('V', i) for i in range(4, 8)]
    else:
        kv = [('K',0),('K',1),('K',2),('K',3),('V',0),('V',1),('K',4),('K',5),('V',2),('V',3),('K',6),('K',7),('V',4),('V',5),('V',6),('V',7)]
        for j in range(NQP):
            queue += [('W', j), ('X', j)]
            if 1 <= j <= 6: queue.append(kv.pop(0))
        queue += kv
    queue.append(('J', 0))
    REG = "reg" in OPT
    if REG:
        queue = []
        lds_kv = [('K',0),('K',1),('K',2),('K',3),('V',0),('V',1)]
        reg_kv = [('K',4),('K',5),('V',2),('V',3),('K',6),('K',7),('V',4),('V',5),('V',6),('V',7)]
        plan_l = {1:1, 2:1, 3:1, 4:1, 5:1, 6:1}
        plan_r = {2:1, 3:1, 4:1, 5:1, 6:1, 7:2, 8:2, 9:1}
        if "regearly" in OPT: plan_r = {1:2, 2:2, 3:2, 4:2, 5:2}
        if "reglate" in OPT: plan_r = {5:2, 6:2, 7:2, 8:2, 9:2}
        for j in range(NQP):
            queue += [('W', j), ('X', j)]
            for _ in range(plan_l.get(j, 0)): queue.append(lds_kv.pop(0))
            for _ in range(plan_r.get(j, 0)): queue.append(reg_kv.pop(0) + ('R',))
        queue.append(('J', 0))
    commitq = []
    regs_of = {}
    committed = {}
    stepno = [0]
    def issueR(item):
        kind, idx, _ = item
        rb = 96 + 16*len(regs_of)
        regs_of[(kind, idx)] = rb
        for i in range(4):
            if kind == 'K':
                a("s_mov_b32 s%d, %d" % (sT0, idx*SLOT))
                a("buffer_load_dwordx4 %s, v%d, s[%d:%d], s%d offen nt" % (ar(rb+4*i, 4), vKd+i, sK, sK+3, sT0))
            else:
                a("s_mov_b32 s%d, %d" % (sT0, idx*SLOT + i*1024))
                a("buffer_load_dwordx4 %s, v%d, s[%d:%d], s%d offen nt" % (ar(rb+4*i, 4), vVd, sV, sV+3, sT0))
        issued.append((kind, idx)); cnts.append(4)
        commitq.append((kind, idx))
    def commit(item):
        sl = free.pop(0)
        slot_of[item] = sl
        last = issued.index(item)
        a("s_waitcnt vmcnt(%d)" % min(63, sum(cnts[last+1:])))
        a("s_add_u32 s%d, s%d, %d" % (sT0, sW4k, sl*SLOT))
        a("v_lshl_add_u32 v%d, v%d, 4, s%d" % (vt0, vL, sT0))
        for i in range(4):
            a("ds_write_b128 v%d, %s offset:%d" % (vt0, ar(regs_of[item]+4*i, 4), i*1024))
        committed[item] = stepno[0]
    allowJ = [False]
    def issueJ():
        sa, sb = free.pop(0), free.pop(0)
        a("s_cmp_lt_u32 s%d, 2" % sWv)
        a("s_mov_b32 s%d, %d" % (sT0, sa*SLOT))
        a("s_cselect_b32 s%d, s%d, %d" % (sJl, sT0, sb*SLOT))
        a("s_and_b32 s%d, s%d, 1" % (sT0, sWv)); a("s_lshl_b32 s%d, s%d, 13" % (sT0, sT0)); a("s_add_u32 s%d, s%d, s%d" % (sJl, sJl, sT0))
        a("s_lshl_b32 s%d, s2, 2" % sT0); a("s_add_u32 s%d, s%d, s%d" % (sT0, sT0, sWv))
        a("s_and_b32 s%d, s%d, 7" % (sT1, sT0)); a("s_lshr_b32 s%d, s%d, 3" % (sT0, sT0))
        a("s_mul_i32 s%d, s%d, 160" % (sT1, sT1)); a("s_mul_i32 s%d, s%d, %d" % (sT0, sT0, 32*1280)); a("s_add_u32 s%d, s%d, s%d" % (sT2, sT0, sT1))
        a("s_mov_b32 s%d, 52429" % sT0); a("s_movk_i32 s%d, 1280" % sT1); a("s_movk_i32 s%d, 10" % sT3)
        for i in range(5):
            a("v_add_u32 v%d, %d, v%d" % (vQ+5, 64*i, vL))
            a("v_mul_lo_u32 v%d, v%d, s%d" % (vQ+6, vQ+5, sT0))
            a("v_lshrrev_b32 v%d, 19, v%d" % (vQ+6, vQ+6))
            a("v_mul_lo_u32 v%d, v%d, s%d" % (vQ+7, vQ+6, sT3))
            a("v_sub_u32 v%d, v%d, v%d" % (vQ+7, vQ+5, vQ+7))
            a("v_mul_lo_u32 v%d, v%d, s%d" % (vQ+6, vQ+6, sT1))
            a("v_lshl_add_u32 v%d, v%d, 4, v%d" % (vQ+i, vQ+7, vQ+6))
        for i in range(5):
            a("s_add_u32 m0, s%d, %d" % (sJl, i*1024))
            a("s_nop 0")
            a("buffer_load_dwordx4 v%d, s[%d:%d], s%d offen nt lds" % (vQ+i, sWO, sWO+3, sT2))
        issued.append(('J', 0)); cnts.append(5)
    def fill():
        while queue and (free or len(queue[0]) == 3):
            if queue[0][0] == 'J':
                if len(free) < 2 or not allowJ[0]: break
                queue.pop(0); issueJ(); continue
            if len(queue[0]) == 3:
                free_dummy = issueR(queue.pop(0)); continue
            issue(queue.pop(0))
    pending_free = []
    def step_begin(items):
        stepno[0] += 1
        dma = [it for it in items if it not in regs_of]
        for it in items:
            if it in regs_of: assert committed[it] < stepno[0], (it, committed, stepno)
        if dma:
            last = max(issued.index(it) for it in dma)
            n = min(63, sum(cnts[last+1:]))
        else:
            n = 63
        a("s_waitcnt vmcnt(%d) lgkmcnt(0)" % n)
        a("s_barrier")
        free.extend(pending_free); pending_free.clear()
        fill()
        while free and commitq and not (queue and queue[0][0] in 'WX'):
            commit(commitq.pop(0))
    def step_end(items):
        for it in items: pending_free.append(slot_of[it])

    stamp(True)
    stamp()
    fill()
    stamp()

    a.c("Q projection")
    def fa(n): return aF + 4*n
    for j in range(NQP):
        items = [('W', j), ('X', j)]
        step_begin(items)
        if j in (0, 3, 6): stamp()
        wb, xb = slot_of[('W', j)]*SLOT, slot_of[('X', j)]*SLOT
        for dt in range(4): a("v_add_u32 v%d, %d, v%d" % (vT+dt, wb, vTr+dt))
        for kk in range(4): a("v_add_u32 v%d, %d, v%d" % (vT+4+kk, xb, vXr+kk))
        def rd(kk, buf):
            b0 = buf*5
            a("ds_read_b128 %s, v%d" % (ar(fa(b0+4), 4), vT+4+kk))
            for dt in range(4):
                a("ds_read_b64_tr_b16 %s, v%d offset:%d" % (ar(fa(b0+dt), 2), vT+dt, kk*4096))
                a("ds_read_b64_tr_b16 %s, v%d offset:%d" % (ar(fa(b0+dt)+2, 2), vT+dt, kk*4096+1024))
        rd(0, 0)
        for kk in range(4):
            buf = kk & 1
            if kk < 3:
                rd(kk+1, buf ^ 1)
                a("s_waitcnt lgkmcnt(9)")
            else:
                a("s_waitcnt lgkmcnt(0)")
            for dt in range(4):
                c = "0" if (j == 0 and kk == 0) else vr(vO+16*dt, 16)
                a("v_mfma_f32_32x32x16_bf16 %s, %s, %s, %s" % (vr(vO+16*dt, 16), ar(fa(buf*5+dt), 4), ar(fa(buf*5+4), 4), c))
        step_end(items)
    a.nop(12)
    stamp()
    for dt in range(4):
        for i in range(0, 16, 2):
            t = vt0 + (i//2) % 2
            a("v_cvt_pk_bf16_f32 v%d, v%d, v%d" % (t, vO+16*dt+i, vO+16*dt+i+1))
            a("v_accvgpr_write_b32 a%d, v%d" % (aQ + 8*dt + i//2, t))
    a.nop(2)

    vT2 = 248
    HACK = "hackarch" in OPT
    PFS = 12; PFV = 7
    for o in OPT:
        if o.startswith("pfs"): PFS = int(o[3:])
        if o.startswith("pfv"): PFV = int(o[3:])
    if HACK: vT2 = vT
    def fr(n, k=4, o=0):
        if HACK: return vr(240 + 4*(n % 4) + o, k)
        return ar(fa(n % 16) + o, k)
    setno = [0]
    def unit_reads(kind, q):
        b = vS + 64*(q & 1)
        out = []
        if kind == 'S':
            items = [('K', 2*q), ('K', 2*q+1)]
            for c in range(2):
                base = (vT, vT2)[setno[0] % 2]; setno[0] += 1
                kb = slot_of[items[c]]*SLOT
                setup = ["v_add_u32 v%d, %d, v%d" % (base+ks, kb, vKr+ks) for ks in range(8)]
                for t in range(2):
                    for ks in range(8):
                        T = 2*c + t
                        cc = "0" if ks == 0 else vr(b+16*T, 16)
                        out.append(([("ds_read_b128 %s, v%d offset:%d", 4, 0, base+ks, t*8192)],
                                    "v_mfma_f32_32x32x16_bf16 %s, %%s, %s, %s" % (vr(b+16*T, 16), ar(aQ+4*ks, 4), cc), setup))
                        setup = []
        else:
            items = [('V', 2*q), ('V', 2*q+1)]
            for c in range(2):
                base = (vT, vT2)[setno[0] % 2]; setno[0] += 1
                vb = slot_of[items[c]]*SLOT
                setup = ["v_add_u32 v%d, %d, v%d" % (base+dt, vb, vTr+dt) for dt in range(4)]
                for k4 in range(4):
                    for dt in range(4):
                        kst = 4*c + k4
                        T, jj = kst // 2, kst % 2
                        cc = "0" if (q == 0 and kst == 0) else vr(vO+16*dt, 16)
                        out.append(([("ds_read_b64_tr_b16 %s, v%d offset:%d", 2, 0, base+dt, k4*4096),
                                     ("ds_read_b64_tr_b16 %s, v%d offset:%d", 2, 2, base+dt, k4*4096+1024)],
                                    "v_mfma_f32_32x32x16_bf16 %s, %%s, %s, %s" % (vr(vO+16*dt, 16), vr(b+16*T+4*jj, 4), cc), setup))
                        setup = []
        return out
    def run_step(items, units):
        step_begin(items)
        seq = []
        for ui, (kind, q, valu, pre) in enumerate(units):
            for r, m, su in unit_reads(kind, q): seq.append((r, m, ui, su))
        N = len(seq)
        issued_reads = [0]
        lastpos = {}
        done_upto = [0]
        nxt = [0]
        MAXOUT = 14
        def issue_upto(limit):
            while nxt[0] < min(N, limit):
                r, m, ui, su = seq[nxt[0]]
                for x in su: a(x)
                for (fmt, k, o, vaddr, off) in r:
                    a(fmt % (fr(nxt[0], k, o), vaddr, off))
                    issued_reads[0] += 1
                lastpos[nxt[0]] = issued_reads[0]
                nxt[0] += 1
        LOOK = 6
        issue_upto(LOOK)
        vpos = [0]*len(units)
        counts = [sum(1 for x in seq if x[2] == ui) for ui in range(len(units))]
        seen = [0]*len(units)
        for n in range(N):
            r, m, ui, su = seq[n]
            if seen[ui] == 0:
                for x in units[ui][3]: a(x)
            issue_upto(n + 1 + LOOK)
            if lastpos[n] > done_upto[0]:
                tgt = lastpos[min(n+1, nxt[0]-1)]
                c = issued_reads[0] - tgt
                assert c <= 15
                a("s_waitcnt lgkmcnt(%d)" % c)
                done_upto[0] = tgt
            a(m % fr(n))
            seen[ui] += 1
            valu = units[ui][2]
            per = -(-len(valu) // counts[ui]) if valu else 0
            for x in valu[vpos[ui]:vpos[ui]+per]: a(x)
            vpos[ui] += per
            if "few" not in OPT and seen[ui] == counts[ui]: stamp()
        step_end(items)
    vL2 = 0
    def sm_stream(q):
        b = vS + 64*(q & 1)
        v = []
        pm = [vt0, vt1, vt2, vt3]
        for T in range(4):
            r = b + 16*T
            v.append("v_max3_f32 v%d, v%d, v%d, v%d" % (pm[T], r, r+1, r+2))
            for i in range(3, 15, 2):
                v.append("v_max3_f32 v%d, v%d, v%d, v%d" % (pm[T], pm[T], r+i, r+i+1))
            v.append("v_max_f32 v%d, v%d, v%d" % (pm[T], pm[T], r+15))
        v.append("v_max3_f32 v%d, v%d, v%d, v%d" % (vt0, vt0, vt1, vt2))
        v.append("v_max_f32 v%d, v%d, v%d" % (vt0, vt0, vt3))
        v.append("v_mov_b32 v%d, v%d" % (vt1, vt0))
        v.append("s_nop 1")
        v.append("v_permlane32_swap_b32 v%d, v%d" % (vt0, vt1))
        v.append("v_max_f32 v%d, v%d, v%d" % (vt0, vt0, vt1))
        if q == 0:
            v.append("v_mov_b32 v%d, v%d" % (vM, vt0))
            v.append("v_mov_b32 v%d, 0" % vLsum)
            v.append("v_mov_b32 v%d, 0" % vL2)
        else:
            v.append("v_max_f32 v%d, v%d, v%d" % (vt0, vt0, vM))
            v.append("v_sub_f32 v%d, v%d, v%d" % (vt1, vM, vt0))
            v.append("v_mul_f32 v%d, s%d, v%d" % (vt1, sC, vt1))
            v.append("v_exp_f32 v%d, v%d" % (vF, vt1))
            v.append("v_mov_b32 v%d, v%d" % (vM, vt0))
            v.append("s_nop 0")
            v.append("v_mul_f32 v%d, v%d, v%d" % (vLsum, vLsum, vF))
            v.append("v_mul_f32 v%d, v%d, v%d" % (vL2, vL2, vF))
        v.append("v_mul_f32 v%d, s%d, v%d" % (vMC, sC, vM))
        for T in range(4):
            r = b + 16*T
            for i in range(16):
                v.append("v_fma_f32 v%d, v%d, s%d, -v%d" % (r+i, r+i, sC, vMC))
            for i in range(16):
                v.append("v_exp_f32 v%d, v%d" % (r+i, r+i))
            v.append("s_nop 0")
            for i in range(16):
                l = vLsum if i % 2 == 0 else vL2
                v.append("v_add_f32 v%d, v%d, v%d" % (l, l, r+i))
            for i in range(8):
                v.append("v_cvt_pk_bf16_f32 v%d, v%d, v%d" % (r+i, r+2*i, r+2*i+1))
        return v
    def rescale_stream():
        return ["s_nop 7", "s_nop 7"] + ["v_mul_f32 v%d, v%d, v%d" % (vO+i, vO+i, vF) for i in range(64)]
    allowJ[0] = False
    K_ = lambda *i: [('K', x) for x in i]
    V_ = lambda *i: [('V', x) for x in i]
    run_step(K_(0,1,2,3), [('S',0,[],[]), ('S',1,sm_stream(0),[])])
    run_step(V_(0,1)+K_(4,5), [('P',0,sm_stream(1),[]), ('S',2,rescale_stream(),[])])
    run_step(V_(2,3)+K_(6,7), [('P',1,sm_stream(2),[]), ('S',3,rescale_stream(),[])])
    allowJ[0] = True
    run_step(V_(4,5,6,7), [('P',2,sm_stream(3),[]), ('P',3,[],rescale_stream()+["s_nop 1"])])
    a.nop(12)
    a("v_add_f32 v%d, v%d, v%d" % (vLsum, vLsum, vL2))
    a("v_mov_b32 v%d, v%d" % (vt1, vLsum))
    a("s_nop 1")
    a("v_permlane32_swap_b32 v%d, v%d" % (vLsum, vt1))
    a("v_add_f32 v%d, v%d, v%d" % (vLsum, vLsum, vt1))
    a("v_rcp_f32 v%d, v%d" % (vF, vLsum))
    a("s_nop 0")
    for dt in range(4):
        for jj in range(2):
            src = vO + 16*dt + 8*jj
            base = vS + 16*dt + 8*jj
            for i in range(8):
                a("v_mul_f32 v%d, v%d, v%d" % (src+i, src+i, vF))
            for i in range(4):
                a("v_cvt_pk_bf16_f32 v%d, v%d, v%d" % (base+i, src+2*i, src+2*i+1))
            a("buffer_store_dwordx4 %s, v%d, s[%d:%d], 0 offen offset:%d %s" % (vr(base, 4), vOst, sO, sO+3, dt*1024+jj*512, "nt" if "ntst" in OPT else ""))
    a.mute = False
    a("s_waitcnt vmcnt(8)")
    a("v_lshrrev_b32 v%d, 4, v%d" % (vt1, vL))
    a("v_and_b32 v%d, 15, v%d" % (vt2, vL))
    a("v_lshrrev_b32 v%d, 2, v%d" % (vt3, vt2))
    a("v_lshl_add_u32 v%d, v%d, 3, v%d" % (vt1, vt1, vt3))
    a("s_movk_i32 s%d, 160" % sT2)
    a("v_mul_lo_u32 v%d, v%d, s%d" % (vt1, vt1, sT2))
    a("v_and_b32 v%d, 3, v%d" % (vt2, vt2))
    a("v_lshl_add_u32 v%d, v%d, 3, v%d" % (vt1, vt2, vt1))
    a("v_add_u32 v%d, s%d, v%d" % (vt1, sJl, vt1))
    a("s_lshl_b32 s%d, s2, 2" % sT0); a("s_add_u32 s%d, s%d, s%d" % (sT0, sT0, sWv))
    a("s_and_b32 s%d, s%d, 7" % (sT1, sT0)); a("s_lshr_b32 s%d, s%d, 3" % (sT0, sT0))
    a("s_mul_i32 s%d, s%d, %d" % (sT1, sT1, 5*131072)); a("s_lshl_b32 s%d, s%d, 10" % (sT0, sT0))
    a("s_add_u32 s%d, s%d, s%d" % (sT0, sT0, sT1)); a("s_add_u32 s%d, s%d, %d" % (sT0, sT0, OFF_WOT))
    a("v_lshlrev_b32 v%d, 4, v%d" % (vt2, vL))
    for nt in range(5):
        a("ds_read_b64_tr_b16 %s, v%d offset:%d" % (vr(vFB+4*nt, 2), vt1, nt*32))
        a("ds_read_b64_tr_b16 %s, v%d offset:%d" % (vr(vFB+4*nt+2, 2), vt1, nt*32+640))
    a("s_waitcnt lgkmcnt(0)")
    for nt in range(5):
        a("s_add_u32 s%d, s%d, %d" % (sT1, sT0, nt*131072))
        a("buffer_store_dwordx4 %s, v%d, s[%d:%d], s%d offen %s" % (vr(vFB+4*nt, 4), vt2, sO, sO+3, sT1, "nt" if "ntst" in OPT else ""))
    stamp()
    stamp(True)
    a.lab("k1_done")
    a("s_endpgm")

def gen_k2(a):
    nst = [0]
    def stamp(real=False):
        if "stamp2" not in OPT: return
        a("s_memrealtime s[60:61]" if real else "s_memtime s[60:61]")
        a("s_waitcnt lgkmcnt(0)")
        a("v_mov_b32 v6, s60")
        a("s_lshl_b32 s62, s2, 8")
        a("s_add_u32 s62, s62, %d" % (nst[0]*4))
        a("s_mov_b64 s[64:65], exec")
        a("s_mov_b64 exec, 1")
        a("v_mov_b32 v7, 0")
        a("buffer_store_dword v6, v7, s[68:71], s62 offen")
        a("s_mov_b64 exec, s[64:65]")
        nst[0] += 1
    sWS, sP, sOut = 8, 12, 40
    sB, sNB, sKS, sWv = 16, 17, 18, 19
    sT0, sT1, sT2 = 20, 21, 22
    sRot = 23
    sA = 24
    sBq = 32
    v0off, v1off = 1, 2
    vF = 8
    DEPTH = 4
    a.lab("k2_kernel")
    a("s_cmp_ge_u32 s2, 256")
    a("s_cbranch_scc1 k2_done")
    a("s_load_dwordx2 s[4:5], s[0:1], 56")
    a("s_load_dwordx4 s[44:47], s[0:1], 32")
    a("s_load_dwordx2 s[48:49], s[0:1], 48")
    a("v_and_b32 v3, 63, v0")
    a("v_lshrrev_b32 v4, 6, v0")
    a("s_nop 0")
    a("v_readfirstlane_b32 s%d, v4" % sWv)
    a("s_and_b32 s%d, s2, 3" % sKS)
    a("s_lshr_b32 s%d, s2, 2" % sT0); a("s_and_b32 s%d, s%d, 1" % (sT0, sT0)); a("s_lshl_b32 s%d, s%d, 2" % (sT0, sT0))
    a("s_lshr_b32 s%d, s2, 3" % sT1); a("s_and_b32 s%d, s%d, 3" % (sB, sT1))
    a("s_lshl_b32 s%d, s%d, 1" % (sRot, sB))
    a("s_add_u32 s%d, s%d, s%d" % (sB, sB, sT0))
    a("s_lshr_b32 s%d, s2, 5" % sNB)
    a("s_add_u32 s%d, s%d, s%d" % (sRot, sRot, sNB))
    a("v_lshlrev_b32 v%d, 4, v3" % v0off)
    a("s_waitcnt lgkmcnt(0)")
    a("s_mov_b32 s%d, s4" % sWS); a("s_and_b32 s%d, s5, 0xffff" % (sWS+1)); a("s_mov_b32 s%d, %d" % (sWS+2, OFF_PART)); a("s_mov_b32 s%d, 0x20000" % (sWS+3))
    a("s_add_u32 s%d, s4, %d" % (sP, OFF_PART)); a("s_addc_u32 s%d, s5, 0" % (sP+1)); a("s_and_b32 s%d, s%d, 0xffff" % (sP+1, sP+1))
    a("s_mov_b32 s%d, %d" % (sP+2, 4*64*35*1024)); a("s_mov_b32 s%d, 0x20000" % (sP+3))
    a("s_mov_b32 s%d, s46" % sOut); a("s_and_b32 s%d, s47, 0xffff" % (sOut+1)); a("s_mov_b32 s%d, %d" % (sOut+2, 896*640*2)); a("s_mov_b32 s%d, 0x20000" % (sOut+3))
    a("s_mov_b32 s52, s48"); a("s_and_b32 s53, s49, 0xffff"); a("s_mov_b32 s54, 256"); a("s_mov_b32 s55, 0x20000")
    a("s_add_u32 s68, s4, %d" % OFF_DBG); a("s_addc_u32 s69, s5, 0"); a("s_and_b32 s69, s69, 0xffff"); a("s_mov_b32 s70, 65536"); a("s_mov_b32 s71, 0x20000")
    stamp(True); stamp()
    a("s_lshl_b32 s%d, s%d, 5" % (sT0, sKS)); a("s_lshl_b32 s%d, s%d, 3" % (sT1, sWv)); a("s_add_u32 s%d, s%d, s%d" % (sT0, sT0, sT1))
    a("s_lshl_b32 s%d, s%d, 10" % (sT0, sT0))
    a("s_mul_i32 s%d, s%d, %d" % (sT1, sNB, 5*131072)); a("s_add_u32 s%d, s%d, s%d" % (sT1, sT1, sT0)); a("s_add_u32 s%d, s%d, %d" % (sT1, sT1, OFF_WOT))
    for n in range(5): a("s_add_u32 s%d, s%d, %d" % (sA+n, sT1, n*131072))
    a("s_mul_i32 s%d, s%d, %d" % (sT1, sB, 7*131072)); a("s_add_u32 s%d, s%d, s%d" % (sT1, sT1, sT0))
    for r in range(7): a("s_add_u32 s%d, s%d, %d" % (sBq+r, sT1, r*131072))
    def ld(k):
        buf = k % DEPTH
        a("s_add_u32 s%d, s%d, %d" % (sT2, sRot, k)); a("s_and_b32 s%d, s%d, 7" % (sT2, sT2)); a("s_lshl_b32 s%d, s%d, 10" % (sT2, sT2))
        a("v_add_u32 v%d, s%d, v%d" % (v1off, sT2, v0off))
        for f in range(12):
            sb = sA+f if f < 5 else sBq+f-5
            a("buffer_load_dwordx4 %s, v%d, s[%d:%d], s%d offen %s" % (vr(vF+(buf*12+f)*4, 4), v1off, sWS, sWS+3, sb, "nt" if "ntk2" in OPT else ""))
    for k in range(DEPTH): ld(k)
    for k in range(8):
        buf = k % DEPTH
        rem = min(8, k+DEPTH) - (k+1)
        a("s_waitcnt vmcnt(%d)" % (12*rem))
        if k in (0, 3): stamp()
        for n in range(5):
            for r in range(7):
                t = n*7 + r
                c = "0" if k == 0 else ar(4*t, 4)
                a("v_mfma_f32_16x16x32_bf16 %s, %s, %s, %s" % (ar(4*t, 4), vr(vF+(buf*12+n)*4, 4), vr(vF+(buf*12+5+r)*4, 4), c))
        if k + DEPTH < 8: ld(k+DEPTH)
    a.nop(10)
    stamp()
    a("s_mul_i32 s%d, s%d, %d" % (sT0, sWv, 35*1024))
    a("v_add_u32 v4, s%d, v%d" % (sT0, v0off))
    for t in range(35):
        a("ds_write_b128 v4, %s offset:%d" % (ar(4*t, 4), t*1024))
    a("s_waitcnt lgkmcnt(0)")
    a("s_barrier")
    sBN = 56
    a("s_lshl_b32 s%d, s%d, 3" % (sBN, sB)); a("s_add_u32 s%d, s%d, s%d" % (sBN, sBN, sNB))
    a("s_lshl_b32 s%d, s%d, 10" % (sT1, sWv))
    a("s_mul_i32 s%d, s%d, %d" % (sT0, sBN, 35*1024)); a("s_add_u32 s%d, s%d, s%d" % (sT0, sT0, sT1))
    sPB = 57
    a("s_mov_b32 s%d, s%d" % (sPB, sT0))
    a("s_mul_i32 s%d, s%d, %d" % (sT2, sKS, 64*35*1024)); a("s_add_u32 s%d, s%d, s%d" % (sT0, sT0, sT2))
    a("v_add_u32 v4, s%d, v%d" % (sT1, v0off))
    a("v_add_u32 v5, %d, v4" % (35*1024))
    a("v_add_u32 v6, %d, v4" % (2*35*1024))
    a("v_add_u32 v7, %d, v4" % (3*35*1024))
    for i in range(9):
        o = i*4096
        for wv, vreg in enumerate((4, 5, 6, 7)):
            a("ds_read_b128 v[%d:%d], v%d offset:%d" % (64+i*16+4*wv, 67+i*16+4*wv, vreg, o))
    for i in range(9):
        o = i*4096
        a("s_waitcnt lgkmcnt(%d)" % min(15, 4*(8-i)))
        b0 = 64+i*16
        for e in range(4):
            a("v_add_f32 v%d, v%d, v%d" % (b0+e, b0+e, b0+4+e))
            a("v_add_f32 v%d, v%d, v%d" % (b0+8+e, b0+8+e, b0+12+e))
        d = 24 + 4*i
        for e in range(4):
            a("v_add_f32 v%d, v%d, v%d" % (d+e, b0+e, b0+8+e))
        if i == 8:
            a("s_cmp_ge_u32 s%d, 3" % sWv)
            a("s_cbranch_scc1 k2_st_done")
        a("s_add_u32 s%d, s%d, %d" % (sT1, sT0, o))
        a("buffer_store_dwordx4 v[%d:%d], v%d, s[%d:%d], s%d offen sc0 sc1" % (d, d+3, v0off, sP, sP+3, sT1))
    a.lab("k2_st_done")
    stamp()
    a("s_waitcnt vmcnt(0)")
    a("s_barrier")
    stamp()
    a("s_cmp_lg_u32 s%d, 0" % sWv)
    a("s_cbranch_scc1 k2_wait")
    a("s_lshl_b32 s%d, s%d, 2" % (sT1, sBN))
    a("v_mov_b32 v4, 1")
    a("v_mov_b32 v5, s%d" % sT1)
    a("s_mov_b64 s[58:59], exec")
    a("s_mov_b64 exec, 1")
    a("buffer_atomic_add v4, v5, s[52:55], 0 offen sc0 sc1")
    a("s_waitcnt vmcnt(0)")
    a("v_mov_b32 v5, 0")
    a("ds_write_b32 v5, v4")
    a("s_waitcnt lgkmcnt(0)")
    a("s_mov_b64 exec, s[58:59]")
    a.lab("k2_wait")
    a("s_barrier")
    a("v_mov_b32 v5, 0")
    a("ds_read_b32 v4, v5")
    a("s_waitcnt lgkmcnt(0)")
    a("s_nop 0")
    a("v_readfirstlane_b32 s%d, v4" % sT1)
    a("s_nop 3")
    stamp()
    a("s_cmp_lg_u32 s%d, 3" % sT1)
    a("s_cbranch_scc1 k2_done")
    a("v_and_b32 v4, 15, v3")
    a("s_mul_i32 s%d, s%d, 112" % (sT1, sB))
    a("v_add_u32 v4, s%d, v4" % sT1)
    a("s_movk_i32 s%d, 1280" % sT1)
    a("v_mul_lo_u32 v4, v4, s%d" % sT1)
    a("v_lshrrev_b32 v5, 4, v3")
    a("v_lshl_add_u32 v4, v5, 3, v4")
    a("s_mul_i32 s%d, s%d, 160" % (sT1, sNB))
    a("v_add_u32 v4, s%d, v4" % sT1)
    def tile_loads(i):
        for ks in range(4):
            a("s_add_u32 s%d, s%d, %d" % (sT1, sPB, ks*64*35*1024 + i*4096))
            d = 64 + i*16 + 4*ks
            a("buffer_load_dwordx4 v[%d:%d], v%d, s[%d:%d], s%d offen sc0 sc1" % (d, d+3, v0off, sP, sP+3, sT1))
    def tile_fin(i):
        d = 64 + i*16
        a("s_add_u32 s%d, s%d, %d" % (sT0, sWv, 4*i))
        a("s_mul_i32 s%d, s%d, 37" % (sT1, sT0)); a("s_lshr_b32 s%d, s%d, 8" % (sT1, sT1))
        a("s_mul_i32 s%d, s%d, 7" % (sT2, sT1)); a("s_sub_u32 s%d, s%d, s%d" % (sT2, sT0, sT2))
        a("s_mul_i32 s%d, s%d, %d" % (sT2, sT2, 16*1280)); a("s_lshl_b32 s%d, s%d, 5" % (sT1, sT1)); a("s_add_u32 s%d, s%d, s%d" % (sT1, sT1, sT2))
        for e in range(4):
            a("v_add_f32 v%d, v%d, v%d" % (d+e, d+e, d+4+e))
            a("v_add_f32 v%d, v%d, v%d" % (d+8+e, d+8+e, d+12+e))
        for e in range(4):
            a("v_add_f32 v%d, v%d, v%d" % (d+e, d+e, d+8+e))
        a("v_cvt_pk_bf16_f32 v%d, v%d, v%d" % (d+4, d, d+1))
        a("v_cvt_pk_bf16_f32 v%d, v%d, v%d" % (d+5, d+2, d+3))
        a("buffer_store_dwordx2 v[%d:%d], v4, s[%d:%d], s%d offen" % (d+4, d+5, sOut, sOut+3, sT1))
    for i in range(9): tile_loads(i)
    for i in range(8):
        a("s_waitcnt vmcnt(%d)" % (4*(8-i) + i))
        tile_fin(i)
    a("s_cmp_ge_u32 s%d, 3" % sWv)
    a("s_cbranch_scc1 k2_done")
    a("s_waitcnt vmcnt(8)")
    tile_fin(8)
    stamp(); stamp(True)
    a.lab("k2_done")
    a("s_endpgm")

def gen_k3(a):
    a.lab("k3_kernel")
    a("s_cmp_ge_u32 s2, 560")
    a("s_cbranch_scc1 k3_done")
    a("s_load_dwordx2 s[4:5], s[0:1], 56")
    a("s_load_dwordx2 s[6:7], s[0:1], 40")
    a("v_and_b32 v3, 63, v0")
    a("v_lshrrev_b32 v4, 6, v0")
    a("s_nop 0")
    a("v_readfirstlane_b32 s16, v4")
    a("s_lshl_b32 s17, s2, 2")
    a("s_add_u32 s17, s17, s16")
    a("s_mul_i32 s18, s17, 29960"); a("s_lshr_b32 s18, s18, 20")
    a("s_mul_i32 s19, s18, 35"); a("s_sub_u32 s19, s17, s19")
    a("s_mul_i32 s20, s19, 37"); a("s_lshr_b32 s20, s20, 8")
    a("s_mul_i32 s21, s20, 7"); a("s_sub_u32 s21, s19, s21")
    a("s_lshr_b32 s22, s18, 3")
    a("s_and_b32 s23, s18, 7")
    a("s_waitcnt lgkmcnt(0)")
    a("s_add_u32 s8, s4, %d" % OFF_PART); a("s_addc_u32 s9, s5, 0"); a("s_and_b32 s9, s9, 0xffff")
    a("s_mov_b32 s10, %d" % (4*64*35*1024)); a("s_mov_b32 s11, 0x20000")
    a("s_mov_b32 s12, s6"); a("s_and_b32 s13, s7, 0xffff"); a("s_mov_b32 s14, %d" % (896*640*2)); a("s_mov_b32 s15, 0x20000")
    a("v_lshlrev_b32 v1, 4, v3")
    a("s_lshl_b32 s24, s17, 10")
    for ks in range(4):
        a("s_add_u32 s25, s24, %d" % (ks*64*35*1024))
        a("buffer_load_dwordx4 v[%d:%d], v1, s[8:11], s25 offen" % (8+4*ks, 11+4*ks))
    a("s_mul_i32 s26, s22, 112"); a("s_lshl_b32 s27, s21, 4"); a("s_add_u32 s26, s26, s27")
    a("s_mul_i32 s27, s23, 80"); a("s_lshl_b32 s28, s20, 4"); a("s_add_u32 s27, s27, s28")
    a("v_and_b32 v4, 15, v3")
    a("v_add_u32 v4, s26, v4")
    a("s_mov_b32 s28, 1280")
    a("v_mul_lo_u32 v4, v4, s28")
    a("v_lshrrev_b32 v5, 4, v3")
    a("v_lshlrev_b32 v5, 3, v5")
    a("v_add_u32 v4, v4, v5")
    a("s_lshl_b32 s27, s27, 1")
    a("v_add_u32 v4, s27, v4")
    a("s_waitcnt vmcnt(0)")
    for e in range(4):
        a("v_add_f32 v%d, v%d, v%d" % (8+e, 8+e, 12+e))
        a("v_add_f32 v%d, v%d, v%d" % (16+e, 16+e, 20+e))
    for e in range(4):
        a("v_add_f32 v%d, v%d, v%d" % (8+e, 8+e, 16+e))
    a("v_cvt_pk_bf16_f32 v24, v8, v9")
    a("v_cvt_pk_bf16_f32 v25, v10, v11")
    a("buffer_store_dwordx2 v[24:25], v4, s[12:15], 0 offen")
    a.lab("k3_done")
    a("s_endpgm")

HDR = """; Kernarg layout (64 bytes): x, k_cache, v_cache, wq, wo, d_out, d_debug, d_ws
; @launch kernel=k1_kernel grid=(256,1,1) block=(256,1,1) lds=163840
; @launch kernel=k2_kernel grid=(256,1,1) block=(256,1,1) lds=143360
.amdgcn_target "amdgcn-amd-amdhsa--gfx950"
.text
"""
def kd(name, vgpr, sgpr, acc):
    return """.amdhsa_kernel %s
  .amdhsa_next_free_vgpr %d
  .amdhsa_next_free_sgpr %d
  .amdhsa_accum_offset %d
  .amdhsa_group_segment_fixed_size 0
  .amdhsa_kernarg_size 64
  .amdhsa_user_sgpr_count 2
  .amdhsa_user_sgpr_kernarg_segment_ptr 1
  .amdhsa_system_sgpr_workgroup_id_x 1
.end_amdhsa_kernel
""" % (name, vgpr, sgpr, acc)

def main():
    out = HDR
    for name, fn in (("k1_kernel", gen_k1), ("k2_kernel", gen_k2)):
        a = A(); fn(a)
        out += ".globl %s\n.p2align 8\n.type %s,@function\n" % (name, name) + a.text()
    import struct, math
    cbits = struct.unpack("<I", struct.pack("<f", 128**-0.5 * math.log2(math.e)))[0]
    out = out.replace("0x3e0293ee", "0x%08x" % cbits)
    out += '.section .rodata,"a"\n.p2align 6\n'
    out += kd("k1_kernel", 512, 102, 256)
    out += ".p2align 6\n" + kd("k2_kernel", 348, 102, 208)
    open(sys.argv[1] if len(sys.argv) > 1 else "standalone__gqa_block_cached__near_ridge.s", "w").write(out)

main()
```

```python
import sys

OFF_O    = 0
OFF_WOT  = 8 << 20
OFF_PART = 16 << 20
WS_BYTES = 268435456

class A:
    def __init__(s): s.l = []
    mute = False
    def __call__(s, x):
        if s.mute and not x.startswith(("s_waitcnt","s_barrier","buffer_load","s_add_u32","s_mov_b32 s","s_mem","v_mov_b32 v46","v_mov_b32 v45","s_lshl_b32 s62","s_mov_b64","buffer_store_dword v46")): return
        s.l.append("    " + x)
    def lab(s, x): s.l.append(x + ":")
    def c(s, x): s.l.append("    ; " + x)
    def nop(s, n):
        while n > 0:
            k = min(n, 16); s("s_nop %d" % (k - 1)); n -= k
    def text(s): return "\n".join(s.l) + "\n"

def vr(b, n): return "v[%d:%d]" % (b, b + n - 1)
def ar(b, n): return "a[%d:%d]" % (b, b + n - 1)

STAMPS = len(sys.argv) > 2 and "stamp" in sys.argv[2:]
OPT = set(sys.argv[2:])
OFF_DBG = 32 << 20
def gen_k1(a):
    nst = [0]
    def stamp(real=False):
        if not STAMPS: return
        a("s_memrealtime s[60:61]" if real else "s_memtime s[60:61]")
        a("s_waitcnt lgkmcnt(0)")
        a("v_mov_b32 v%d, s60" % 46)
        a("s_lshl_b32 s62, s2, 8")
        a("s_add_u32 s62, s62, %d" % (nst[0]*4))
        a("s_mov_b64 s[64:65], exec")
        a("s_mov_b64 exec, 1")
        a("v_mov_b32 v45, 0")
        a("buffer_store_dword v46, v45, s[68:71], s62 offen")
        a("s_mov_b64 exec, s[64:65]")
        nst[0] += 1
    SLOT = 16384
    NSLOT = 10
    sX, sK, sV, sW, sO, sWO = 8, 12, 16, 20, 24, 28
    sWv = 32
    sW4k = 33
    sB, sH = 34, 35
    sT0, sT1, sT2, sT3 = 36, 37, 38, 39
    sXoff = 40
    sC = 41
    sWoff = 42
    sRot = 52
    sJl = 53
    vTid = 0
    vL = 1
    vKd = 2
    vVd = 6
    vWd = 7
    vXd = 11
    vXr = 15
    vTr = 19
    vKr = 23
    vT = 31
    vM, vLsum, vMC, vF = 39, 40, 41, 42
    vt0, vt1, vt2, vt3 = 43, 44, 45, 46
    vOst = 47
    vO = 48
    vS = 112
    vQ = 240
    vFB = 112
    aQ = 0
    aF = 32

    a.lab("k1_kernel")
    a("s_cmp_ge_u32 s2, 256")
    a("s_cbranch_scc1 k1_done")
    a("s_load_dwordx4 s[4:7], s[0:1], 0")
    a("s_load_dwordx4 s[44:47], s[0:1], 16")
    a("s_load_dwordx2 s[48:49], s[0:1], 32")
    a("s_load_dwordx2 s[50:51], s[0:1], 56")
    a("v_and_b32 v%d, 63, v0" % vL)
    a("v_lshrrev_b32 v%d, 6, v0" % vt0)
    a("s_nop 0")
    a("v_readfirstlane_b32 s%d, v%d" % (sWv, vt0))
    a("s_lshr_b32 s%d, s2, 5" % sB)
    a("s_and_b32 s%d, s2, 7" % sT0)
    a("s_lshl_b32 s%d, s%d, 2" % (sT0, sT0))
    a("s_lshr_b32 s%d, s2, 3" % sT1)
    a("s_and_b32 s%d, s%d, 3" % (sT1, sT1))
    a("s_add_u32 s%d, s%d, s%d" % (sH, sT0, sT1))
    if "mapB" in OPT:
        a("s_and_b32 s%d, s2, 7" % sB)
        a("s_lshr_b32 s%d, s2, 3" % sH)
    a("s_lshl_b32 s%d, s%d, 12" % (sW4k, sWv))
    a("s_mov_b32 s%d, 0x3e0293ee" % sC)
    a("s_waitcnt lgkmcnt(0)")
    a("s_mov_b32 s%d, s4" % sX); a("s_and_b32 s%d, s5, 0xffff" % (sX+1)); a("s_mov_b32 s%d, %d" % (sX+2, 8*112*640*2)); a("s_mov_b32 s%d, 0x20000" % (sX+3))
    a("s_lshl_b32 s%d, s%d, 5" % (sT0, sB)); a("s_add_u32 s%d, s%d, s%d" % (sT0, sT0, sH))
    a("s_lshl_b32 s%d, s%d, 17" % (sT1, sT0))
    a("s_add_u32 s%d, s6, s%d" % (sK, sT1)); a("s_addc_u32 s%d, s7, 0" % (sK+1)); a("s_and_b32 s%d, s%d, 0xffff" % (sK+1, sK+1))
    a("s_mov_b32 s%d, 131072" % (sK+2)); a("s_mov_b32 s%d, 0x20000" % (sK+3))
    a("s_add_u32 s%d, s44, s%d" % (sV, sT1)); a("s_addc_u32 s%d, s45, 0" % (sV+1)); a("s_and_b32 s%d, s%d, 0xffff" % (sV+1, sV+1))
    a("s_mov_b32 s%d, 131072" % (sV+2)); a("s_mov_b32 s%d, 0x20000" % (sV+3))
    a("s_mov_b32 s%d, s46" % sW); a("s_and_b32 s%d, s47, 0xffff" % (sW+1)); a("s_mov_b32 s%d, %d" % (sW+2, 640*4096*2)); a("s_mov_b32 s%d, 0x20000" % (sW+3))
    a("s_mov_b32 s%d, s50" % sO); a("s_and_b32 s%d, s51, 0xffff" % (sO+1)); a("s_mov_b32 s%d, %d" % (sO+2, OFF_PART)); a("s_mov_b32 s%d, 0x20000" % (sO+3))
    a("s_mov_b32 s%d, s48" % sWO); a("s_and_b32 s%d, s49, 0xffff" % (sWO+1)); a("s_mov_b32 s%d, %d" % (sWO+2, 4096*640*2)); a("s_mov_b32 s%d, 0x20000" % (sWO+3))
    a("s_add_u32 s68, s50, %d" % OFF_DBG); a("s_addc_u32 s69, s51, 0"); a("s_and_b32 s69, s69, 0xffff"); a("s_mov_b32 s70, 65536"); a("s_mov_b32 s71, 0x20000")
    a("s_mul_i32 s%d, s%d, %d" % (sXoff, sB, 112*1280))
    a("s_lshl_b32 s%d, s%d, 8" % (sWoff, sH))
    a("s_and_b32 s%d, s%d, 3" % (sT0, sH)); a("s_mul_i32 s%d, s%d, 3" % (sT0, sT0)); a("s_add_u32 s%d, s%d, s%d" % (sRot, sT0, sB))
    a("s_cmp_ge_u32 s%d, 10" % sRot); a("s_cselect_b32 s%d, 10, 0" % sT0); a("s_sub_u32 s%d, s%d, s%d" % (sRot, sRot, sT0))
    if "norot" in OPT: a("s_mov_b32 s%d, 0" % sRot)
    if "fakeW" in OPT: a("s_mul_i32 s%d, s%d, %d" % (sWoff, sH, 163840))

    l16 = vt0; lhi = vt1
    a("v_and_b32 v%d, 15, v%d" % (l16, vL))
    a("v_lshrrev_b32 v%d, 4, v%d" % (lhi, vL))
    for i in range(4):
        a("v_add_u32 v%d, %d, v%d" % (vt2, 4*i, lhi))
        a("v_xor_b32 v%d, v%d, v%d" % (vt2, vt2, l16))
        a("v_lshlrev_b32 v%d, 4, v%d" % (vt2, vt2))
        a("v_lshl_add_u32 v%d, v%d, 8, v%d" % (vt2, lhi, vt2))
        a("v_add_u32 v%d, %d, v%d" % (vKd+i, 1024*i, vt2))
        a("v_add_u32 v%d, s%d, v%d" % (vKd+i, sW4k, vKd+i))
    a("v_lshlrev_b32 v%d, 2, v%d" % (vt2, lhi))
    a("v_xor_b32 v%d, v%d, v%d" % (vt2, vt2, l16))
    a("v_lshlrev_b32 v%d, 4, v%d" % (vt2, vt2))
    a("v_lshl_add_u32 v%d, v%d, 8, v%d" % (vVd, lhi, vt2))
    a("v_add_u32 v%d, s%d, v%d" % (vVd, sW4k, vVd))
    a("s_lshl_b32 s%d, s%d, 17" % (sT0, sWv))
    if "fakeW" in OPT: a("s_lshl_b32 s%d, s%d, 12" % (sT0, sWv))
    for i in range(4):
        a("v_add_u32 v%d, %d, v%d" % (vt3, 4*i, lhi))
        a("v_lshl_add_u32 v%d, v%d, %d, v%d" % (vWd+i, vt3, 8 if "fakeW" in OPT else 13, vt2))
        a("v_add_u32 v%d, s%d, v%d" % (vWd+i, sT0, vWd+i))
    a("v_and_b32 v%d, 7, v%d" % (vt2, vL))
    a("v_lshrrev_b32 v%d, 3, v%d" % (vt3, vL))
    a("s_mul_i32 s%d, s%d, %d" % (sT0, sWv, 32*1280))
    a("s_mov_b32 s%d, 1280" % sT1)
    for i in range(4):
        a("v_add_u32 v%d, %d, v%d" % (vT, 4*i, lhi))
        a("v_and_b32 v%d, 7, v%d" % (vT, vT))
        a("v_xor_b32 v%d, v%d, v%d" % (vT, vT, vt2))
        a("v_lshlrev_b32 v%d, 4, v%d" % (vT, vT))
        a("v_add_u32 v%d, %d, v%d" % (vT+1, 8*i, vt3))
        a("v_mul_lo_u32 v%d, v%d, s%d" % (vT+1, vT+1, sT1))
        a("v_add_u32 v%d, v%d, v%d" % (vXd+i, vT, vT+1))
        a("v_add_u32 v%d, s%d, v%d" % (vXd+i, sT0, vXd+i))
        a("v_mov_b32 v%d, 0x7fff0000" % (vT+2))
        a("v_cmp_gt_u32 vcc, %d, v%d" % (112*1280, vXd+i))
        a("s_nop 1")
        a("v_cndmask_b32 v%d, v%d, v%d, vcc" % (vXd+i, vT+2, vXd+i))
    l31 = vt2; g = vt3
    a("v_and_b32 v%d, 31, v%d" % (l31, vL))
    a("v_lshrrev_b32 v%d, 5, v%d" % (g, vL))
    a("v_lshrrev_b32 v%d, 1, v%d" % (vT, l31))
    a("v_and_b32 v%d, 7, v%d" % (vT, vT))
    a("v_lshlrev_b32 v%d, 7, v%d" % (vT+1, l31))
    a("v_add_u32 v%d, s%d, v%d" % (vT+1, sW4k, vT+1))
    for kk in range(4):
        a("v_add_u32 v%d, %d, v%d" % (vT+2, 2*kk, g))
        a("v_xor_b32 v%d, v%d, v%d" % (vT+2, vT+2, vT))
        a("v_lshl_add_u32 v%d, v%d, 4, v%d" % (vXr+kk, vT+2, vT+1))
    def swap23(dst, src, t1, t2):
        a("v_and_b32 v%d, 0x13, v%d" % (dst, src))
        a("v_and_b32 v%d, 4, v%d" % (t1, src))
        a("v_and_b32 v%d, 8, v%d" % (t2, src))
        a("v_lshlrev_b32 v%d, 1, v%d" % (t1, t1))
        a("v_lshrrev_b32 v%d, 1, v%d" % (t2, t2))
        a("v_or3_b32 v%d, v%d, v%d, v%d" % (dst, dst, t1, t2))
    swap23(vT, l31, vT+1, vT+2)
    a("v_and_b32 v%d, 15, v%d" % (vT+1, vT))
    for ks in range(8):
        a("v_add_u32 v%d, %d, v%d" % (vT+2, 2*ks, g))
        a("v_xor_b32 v%d, v%d, v%d" % (vT+2, vT+2, vT+1))
        a("v_lshlrev_b32 v%d, 4, v%d" % (vT+2, vT+2))
        a("v_lshl_add_u32 v%d, v%d, 8, v%d" % (vKr+ks, vT, vT+2))
    r_, c_, kr, dq = vT, vT+1, vT+2, vT+3
    a("v_lshrrev_b32 v%d, 2, v%d" % (r_, l16))
    a("v_and_b32 v%d, 3, v%d" % (c_, l16))
    a("v_lshrrev_b32 v%d, 1, v%d" % (kr, lhi))
    a("v_lshl_add_u32 v%d, v%d, 3, v%d" % (kr, kr, r_))
    a("v_and_b32 v%d, 1, v%d" % (vT+4, c_))
    a("v_lshrrev_b32 v%d, 1, v%d" % (vT+5, c_))
    a("v_lshl_or_b32 v%d, v%d, 1, v%d" % (dq, vT+4, vT+5))
    a("v_and_b32 v%d, 1, v%d" % (vT+4, lhi))
    a("v_lshl_add_u32 v%d, v%d, 2, v%d" % (dq, vT+4, dq))
    a("v_lshrrev_b32 v%d, 1, v%d" % (vT+4, dq))
    a("v_and_b32 v%d, 1, v%d" % (vT+5, dq))
    a("v_lshlrev_b32 v%d, 3, v%d" % (vT+5, vT+5))
    a("v_lshl_add_u32 v%d, v%d, 8, v%d" % (vT+5, kr, vT+5))
    a("v_lshlrev_b32 v%d, 2, v%d" % (vT+6, r_))
    for dt in range(4):
        a("v_add_u32 v%d, %d, v%d" % (vT+7, 4*dt, vT+4))
        a("v_xor_b32 v%d, v%d, v%d" % (vT+7, vT+7, vT+6))
        a("v_lshl_add_u32 v%d, v%d, 4, v%d" % (vTr+dt, vT+7, vT+5))
    a("s_lshl_b32 s%d, s%d, 5" % (sT0, sWv))
    a("v_add_u32 v%d, s%d, v%d" % (vT, sT0, l31))
    a("v_lshrrev_b32 v%d, 4, v%d" % (vT+1, vT))
    a("s_mul_i32 s%d, s%d, 7" % (sT1, sB))
    a("v_add_u32 v%d, s%d, v%d" % (vT+1, sT1, vT+1))
    a("v_lshlrev_b32 v%d, 17, v%d" % (vT+1, vT+1))
    a("v_and_b32 v%d, 15, v%d" % (vT+2, vT))
    a("v_lshl_add_u32 v%d, v%d, 4, v%d" % (vT+1, vT+2, vT+1))
    a("v_lshl_add_u32 v%d, v%d, 8, v%d" % (vT+1, g, vT+1))
    a("s_lshl_b32 s%d, s%d, 12" % (sT1, sH))
    a("v_add_u32 v%d, s%d, v%d" % (vT+1, sT1, vT+1))
    a("v_mov_b32 v%d, 0x7fff0000" % (vT+2))
    a("v_cmp_gt_u32 vcc, 112, v%d" % vT)
    a("s_nop 1")
    a("v_cndmask_b32 v%d, v%d, v%d, vcc" % (vOst, vT+2, vT+1))

    free = list(range(NSLOT))
    slot_of = {}
    issued = []
    cnts = []
    def issue(item):
        s = free.pop(0)
        slot_of[item] = s
        kind, idx = item
        for i in range(4):
            a("s_add_u32 m0, s%d, %d" % (sW4k, s*SLOT + i*1024))
            if kind == 'K':
                a("s_mov_b32 s%d, %d" % (sT0, idx*SLOT))
                a("buffer_load_dwordx4 v%d, s[%d:%d], s%d offen %s lds" % (vKd+i, sK, sK+3, sT0, "" if "nontkv" in OPT else "nt"))
            elif kind == 'V':
                a("s_mov_b32 s%d, %d" % (sT0, idx*SLOT + i*1024))
                a("buffer_load_dwordx4 v%d, s[%d:%d], s%d offen %s lds" % (vVd, sV, sV+3, sT0, "" if "nontkv" in OPT else "nt"))
            elif kind == 'W':
                if i == 0:
                    a("s_lshl_b32 s%d, s%d, 19" % (sT1, sRot)); a("s_add_u32 s%d, s%d, s%d" % (sT1, sT1, sWoff))
                a("s_mov_b32 s%d, s%d" % (sT0, sT1))
                a("buffer_load_dwordx4 v%d, s[%d:%d], s%d offen %s lds" % (vWd+i, sW, sW+3, sT0, "nt" if "ntW" in OPT else ""))
            elif kind == 'X':
                if i == 0:
                    a("s_lshl_b32 s%d, s%d, 7" % (sT1, sRot)); a("s_add_u32 s%d, s%d, s%d" % (sT1, sT1, sXoff))
                a("s_mov_b32 s%d, s%d" % (sT0, sT1))
                a("buffer_load_dwordx4 v%d, s[%d:%d], s%d offen %s lds" % (vXd+i, sX, sX+3, sT0, "nt" if "ntW" in OPT else ""))
        if kind == 'X':
            a("s_add_u32 s%d, s%d, 1" % (sRot, sRot)); a("s_cmp_ge_u32 s%d, 10" % sRot); a("s_cselect_b32 s%d, 0, s%d" % (sRot, sRot))
        issued.append(item); cnts.append(4)
        if "stampfill" in OPT and len(issued) <= 10: stamp()
    queue = []
    NQP = 0 if "noQP" in OPT else 10
    if "oldorder" in OPT:
        for j in range(min(3, NQP)): queue += [('W', j), ('X', j)]
        queue += [('K', i) for i in range(4)]
        for j in range(3, NQP): queue += [('W', j), ('X', j)]
        queue += [('V', i) for i in range(4)] + [('K', i) for i in range(4, 8)] + [('V', i) for i in range(4, 8)]
    else:
        kv = [('K',0),('K',1),('K',2),('K',3),('V',0),('V',1),('K',4),('K',5),('V',2),('V',3),('K',6),('K',7),('V',4),('V',5),('V',6),('V',7)]
        for j in range(NQP):
            queue += [('W', j), ('X', j)]
            lo, hi = (1, 6)
            if "kvlate" in OPT: lo, hi = (4, 9)
            if "kvnone" in OPT: lo, hi = (99, 99)
            if "kvearly" in OPT: lo, hi = (0, 5)
            if lo <= j <= hi: queue.append(kv.pop(0))
        queue += kv
    queue.append(('J', 0))
    REG = "reg" in OPT
    if REG:
        queue = []
        lds_kv = [('K',0),('K',1),('K',2),('K',3),('V',0),('V',1)]
        reg_kv = [('K',4),('K',5),('V',2),('V',3),('K',6),('K',7),('V',4),('V',5),('V',6),('V',7)]
        plan_l = {1:1, 2:1, 3:1, 4:1, 5:1, 6:1}
        plan_r = {2:1, 3:1, 4:1, 5:1, 6:1, 7:2, 8:2, 9:1}
        if "regearly" in OPT: plan_r = {1:2, 2:2, 3:2, 4:2, 5:2}
        if "reglate" in OPT: plan_r = {5:2, 6:2, 7:2, 8:2, 9:2}
        for j in range(NQP):
            queue += [('W', j), ('X', j)]
            for _ in range(plan_l.get(j, 0)): queue.append(lds_kv.pop(0))
            for _ in range(plan_r.get(j, 0)): queue.append(reg_kv.pop(0) + ('R',))
        queue.append(('J', 0))
    commitq = []
    regs_of = {}
    committed = {}
    stepno = [0]
    def issueR(item):
        kind, idx, _ = item
        rb = 96 + 16*len(regs_of)
        regs_of[(kind, idx)] = rb
        for i in range(4):
            if kind == 'K':
                a("s_mov_b32 s%d, %d" % (sT0, idx*SLOT))
                a("buffer_load_dwordx4 %s, v%d, s[%d:%d], s%d offen nt" % (ar(rb+4*i, 4), vKd+i, sK, sK+3, sT0))
            else:
                a("s_mov_b32 s%d, %d" % (sT0, idx*SLOT + i*1024))
                a("buffer_load_dwordx4 %s, v%d, s[%d:%d], s%d offen nt" % (ar(rb+4*i, 4), vVd, sV, sV+3, sT0))
        issued.append((kind, idx)); cnts.append(4)
        commitq.append((kind, idx))
    def commit(item):
        sl = free.pop(0)
        slot_of[item] = sl
        last = issued.index(item)
        a("s_waitcnt vmcnt(%d)" % min(63, sum(cnts[last+1:])))
        a("s_add_u32 s%d, s%d, %d" % (sT0, sW4k, sl*SLOT))
        a("v_lshl_add_u32 v%d, v%d, 4, s%d" % (vt0, vL, sT0))
        for i in range(4):
            a("ds_write_b128 v%d, %s offset:%d" % (vt0, ar(regs_of[item]+4*i, 4), i*1024))
        committed[item] = stepno[0]
    allowJ = [False]
    def issueJ():
        sa, sb = free.pop(0), free.pop(0)
        a("s_cmp_lt_u32 s%d, 2" % sWv)
        a("s_mov_b32 s%d, %d" % (sT0, sa*SLOT))
        a("s_cselect_b32 s%d, s%d, %d" % (sJl, sT0, sb*SLOT))
        a("s_and_b32 s%d, s%d, 1" % (sT0, sWv)); a("s_lshl_b32 s%d, s%d, 13" % (sT0, sT0)); a("s_add_u32 s%d, s%d, s%d" % (sJl, sJl, sT0))
        a("s_lshl_b32 s%d, s2, 2" % sT0); a("s_add_u32 s%d, s%d, s%d" % (sT0, sT0, sWv))
        a("s_and_b32 s%d, s%d, 7" % (sT1, sT0)); a("s_lshr_b32 s%d, s%d, 3" % (sT0, sT0))
        a("s_mul_i32 s%d, s%d, 160" % (sT1, sT1)); a("s_mul_i32 s%d, s%d, %d" % (sT0, sT0, 32*1280)); a("s_add_u32 s%d, s%d, s%d" % (sT2, sT0, sT1))
        a("s_mov_b32 s%d, 52429" % sT0); a("s_movk_i32 s%d, 1280" % sT1); a("s_movk_i32 s%d, 10" % sT3)
        for i in range(5):
            a("v_add_u32 v%d, %d, v%d" % (vQ+5, 64*i, vL))
            a("v_mul_lo_u32 v%d, v%d, s%d" % (vQ+6, vQ+5, sT0))
            a("v_lshrrev_b32 v%d, 19, v%d" % (vQ+6, vQ+6))
            a("v_mul_lo_u32 v%d, v%d, s%d" % (vQ+7, vQ+6, sT3))
            a("v_sub_u32 v%d, v%d, v%d" % (vQ+7, vQ+5, vQ+7))
            a("v_mul_lo_u32 v%d, v%d, s%d" % (vQ+6, vQ+6, sT1))
            a("v_lshl_add_u32 v%d, v%d, 4, v%d" % (vQ+i, vQ+7, vQ+6))
        for i in range(5):
            a("s_add_u32 m0, s%d, %d" % (sJl, i*1024))
            a("s_nop 0")
            a("buffer_load_dwordx4 v%d, s[%d:%d], s%d offen nt lds" % (vQ+i, sWO, sWO+3, sT2))
        issued.append(('J', 0)); cnts.append(5)
    def fill():
        while queue and (free or len(queue[0]) == 3):
            if queue[0][0] == 'J':
                if len(free) < 2 or not allowJ[0]: break
                queue.pop(0); issueJ(); continue
            if len(queue[0]) == 3:
                free_dummy = issueR(queue.pop(0)); continue
            issue(queue.pop(0))
    pending_free = []
    def step_begin(items):
        stepno[0] += 1
        dma = [it for it in items if it not in regs_of]
        for it in items:
            if it in regs_of: assert committed[it] < stepno[0], (it, committed, stepno)
        if dma:
            last = max(issued.index(it) for it in dma)
            n = min(63, sum(cnts[last+1:]))
        else:
            n = 63
        a("s_waitcnt vmcnt(%d) lgkmcnt(0)" % n)
        a("s_barrier")
        free.extend(pending_free); pending_free.clear()
        fill()
        while free and commitq and not (queue and queue[0][0] in 'WX'):
            commit(commitq.pop(0))
    def step_end(items):
        for it in items: pending_free.append(slot_of[it])

    stamp(True)
    stamp()
    fill()
    stamp()

    a.c("Q projection")
    def fa(n): return aF + 4*n
    for j in range(NQP):
        items = [('W', j), ('X', j)]
        step_begin(items)
        if j in (0, 3, 6): stamp()
        wb, xb = slot_of[('W', j)]*SLOT, slot_of[('X', j)]*SLOT
        for dt in range(4): a("v_add_u32 v%d, %d, v%d" % (vT+dt, wb, vTr+dt))
        for kk in range(4): a("v_add_u32 v%d, %d, v%d" % (vT+4+kk, xb, vXr+kk))
        def rd(kk, buf):
            b0 = buf*5
            a("ds_read_b128 %s, v%d" % (ar(fa(b0+4), 4), vT+4+kk))
            for dt in range(4):
                a("ds_read_b64_tr_b16 %s, v%d offset:%d" % (ar(fa(b0+dt), 2), vT+dt, kk*4096))
                a("ds_read_b64_tr_b16 %s, v%d offset:%d" % (ar(fa(b0+dt)+2, 2), vT+dt, kk*4096+1024))
        rd(0, 0)
        for kk in range(4):
            buf = kk & 1
            if kk < 3:
                rd(kk+1, buf ^ 1)
                a("s_waitcnt lgkmcnt(9)")
            else:
                a("s_waitcnt lgkmcnt(0)")
            for dt in range(4):
                c = "0" if (j == 0 and kk == 0) else vr(vO+16*dt, 16)
                a("v_mfma_f32_32x32x16_bf16 %s, %s, %s, %s" % (vr(vO+16*dt, 16), ar(fa(buf*5+dt), 4), ar(fa(buf*5+4), 4), c))
        step_end(items)
    a.nop(12)
    stamp()
    for dt in range(4):
        for i in range(0, 16, 2):
            t = vt0 + (i//2) % 2
            a("v_cvt_pk_bf16_f32 v%d, v%d, v%d" % (t, vO+16*dt+i, vO+16*dt+i+1))
            a("v_accvgpr_write_b32 a%d, v%d" % (aQ + 8*dt + i//2, t))
    a.nop(2)

    vT2 = 248
    HACK = "hackarch" in OPT
    PFS = 12; PFV = 7
    for o in OPT:
        if o.startswith("pfs"): PFS = int(o[3:])
        if o.startswith("pfv"): PFV = int(o[3:])
    if HACK: vT2 = vT
    def fr(n, k=4, o=0):
        if HACK: return vr(240 + 4*(n % 4) + o, k)
        return ar(fa(n % 16) + o, k)
    setno = [0]
    def unit_reads(kind, q):
        b = vS + 64*(q & 1)
        out = []
        if kind == 'S':
            items = [('K', 2*q), ('K', 2*q+1)]
            for c in range(2):
                base = (vT, vT2)[setno[0] % 2]; setno[0] += 1
                kb = slot_of[items[c]]*SLOT
                setup = ["v_add_u32 v%d, %d, v%d" % (base+ks, kb, vKr+ks) for ks in range(8)]
                for t in range(2):
                    for ks in range(8):
                        T = 2*c + t
                        cc = "0" if ks == 0 else vr(b+16*T, 16)
                        out.append(([("ds_read_b128 %s, v%d offset:%d", 4, 0, base+ks, t*8192)],
                                    "v_mfma_f32_32x32x16_bf16 %s, %%s, %s, %s" % (vr(b+16*T, 16), ar(aQ+4*ks, 4), cc), setup))
                        setup = []
        else:
            items = [('V', 2*q), ('V', 2*q+1)]
            for c in range(2):
                base = (vT, vT2)[setno[0] % 2]; setno[0] += 1
                vb = slot_of[items[c]]*SLOT
                setup = ["v_add_u32 v%d, %d, v%d" % (base+dt, vb, vTr+dt) for dt in range(4)]
                for k4 in range(4):
                    for dt in range(4):
                        kst = 4*c + k4
                        T, jj = kst // 2, kst % 2
                        cc = "0" if (q == 0 and kst == 0) else vr(vO+16*dt, 16)
                        out.append(([("ds_read_b64_tr_b16 %s, v%d offset:%d", 2, 0, base+dt, k4*4096),
                                     ("ds_read_b64_tr_b16 %s, v%d offset:%d", 2, 2, base+dt, k4*4096+1024)],
                                    "v_mfma_f32_32x32x16_bf16 %s, %%s, %s, %s" % (vr(vO+16*dt, 16), vr(b+16*T+4*jj, 4), cc), setup))
                        setup = []
        return out
    def run_step(items, units):
        step_begin(items)
        seq = []
        for ui, (kind, q, valu, pre) in enumerate(units):
            for r, m, su in unit_reads(kind, q): seq.append((r, m, ui, su))
        N = len(seq)
        issued_reads = [0]
        lastpos = {}
        done_upto = [0]
        nxt = [0]
        MAXOUT = 14
        def issue_upto(limit):
            while nxt[0] < min(N, limit):
                r, m, ui, su = seq[nxt[0]]
                for x in su: a(x)
                for (fmt, k, o, vaddr, off) in r:
                    a(fmt % (fr(nxt[0], k, o), vaddr, off))
                    issued_reads[0] += 1
                lastpos[nxt[0]] = issued_reads[0]
                nxt[0] += 1
        LOOK = 6
        issue_upto(LOOK)
        vpos = [0]*len(units)
        counts = [sum(1 for x in seq if x[2] == ui) for ui in range(len(units))]
        seen = [0]*len(units)
        for n in range(N):
            r, m, ui, su = seq[n]
            if seen[ui] == 0:
                for x in units[ui][3]: a(x)
            issue_upto(n + 1 + LOOK)
            if lastpos[n] > done_upto[0]:
                tgt = lastpos[min(n+1, nxt[0]-1)]
                c = issued_reads[0] - tgt
                assert c <= 15
                a("s_waitcnt lgkmcnt(%d)" % c)
                done_upto[0] = tgt
            a(m % fr(n))
            seen[ui] += 1
            valu = units[ui][2]
            per = -(-len(valu) // counts[ui]) if valu else 0
            for x in valu[vpos[ui]:vpos[ui]+per]: a(x)
            vpos[ui] += per
            if "few" not in OPT and seen[ui] == counts[ui]: stamp()
        step_end(items)
    vL2 = 0
    def sm_stream(q):
        b = vS + 64*(q & 1)
        v = []
        pm = [vt0, vt1, vt2, vt3]
        for T in range(4):
            r = b + 16*T
            v.append("v_max3_f32 v%d, v%d, v%d, v%d" % (pm[T], r, r+1, r+2))
            for i in range(3, 15, 2):
                v.append("v_max3_f32 v%d, v%d, v%d, v%d" % (pm[T], pm[T], r+i, r+i+1))
            v.append("v_max_f32 v%d, v%d, v%d" % (pm[T], pm[T], r+15))
        v.append("v_max3_f32 v%d, v%d, v%d, v%d" % (vt0, vt0, vt1, vt2))
        v.append("v_max_f32 v%d, v%d, v%d" % (vt0, vt0, vt3))
        v.append("v_mov_b32 v%d, v%d" % (vt1, vt0))
        v.append("s_nop 1")
        v.append("v_permlane32_swap_b32 v%d, v%d" % (vt0, vt1))
        v.append("v_max_f32 v%d, v%d, v%d" % (vt0, vt0, vt1))
        if q == 0:
            v.append("v_mov_b32 v%d, v%d" % (vM, vt0))
            v.append("v_mov_b32 v%d, 0" % vLsum)
            v.append("v_mov_b32 v%d, 0" % vL2)
        else:
            v.append("v_max_f32 v%d, v%d, v%d" % (vt0, vt0, vM))
            v.append("v_sub_f32 v%d, v%d, v%d" % (vt1, vM, vt0))
            v.append("v_mul_f32 v%d, s%d, v%d" % (vt1, sC, vt1))
            v.append("v_exp_f32 v%d, v%d" % (vF, vt1))
            v.append("v_mov_b32 v%d, v%d" % (vM, vt0))
            v.append("s_nop 0")
            v.append("v_mul_f32 v%d, v%d, v%d" % (vLsum, vLsum, vF))
            v.append("v_mul_f32 v%d, v%d, v%d" % (vL2, vL2, vF))
        v.append("v_mul_f32 v%d, s%d, v%d" % (vMC, sC, vM))
        for T in range(4):
            r = b + 16*T
            for i in range(16):
                v.append("v_fma_f32 v%d, v%d, s%d, -v%d" % (r+i, r+i, sC, vMC))
            for i in range(16):
                v.append("v_exp_f32 v%d, v%d" % (r+i, r+i))
            v.append("s_nop 0")
            for i in range(16):
                l = vLsum if i % 2 == 0 else vL2
                v.append("v_add_f32 v%d, v%d, v%d" % (l, l, r+i))
            for i in range(8):
                v.append("v_cvt_pk_bf16_f32 v%d, v%d, v%d" % (r+i, r+2*i, r+2*i+1))
        return v
    def rescale_stream():
        return ["s_nop 7", "s_nop 7"] + ["v_mul_f32 v%d, v%d, v%d" % (vO+i, vO+i, vF) for i in range(64)]
    allowJ[0] = False
    K_ = lambda *i: [('K', x) for x in i]
    V_ = lambda *i: [('V', x) for x in i]
    run_step(K_(0,1,2,3), [('S',0,[],[]), ('S',1,sm_stream(0),[])])
    run_step(V_(0,1)+K_(4,5), [('P',0,sm_stream(1),[]), ('S',2,rescale_stream(),[])])
    run_step(V_(2,3)+K_(6,7), [('P',1,sm_stream(2),[]), ('S',3,rescale_stream(),[])])
    allowJ[0] = True
    run_step(V_(4,5,6,7), [('P',2,sm_stream(3),[]), ('P',3,[],rescale_stream()+["s_nop 1"])])
    a.nop(12)
    a("v_add_f32 v%d, v%d, v%d" % (vLsum, vLsum, vL2))
    a("v_mov_b32 v%d, v%d" % (vt1, vLsum))
    a("s_nop 1")
    a("v_permlane32_swap_b32 v%d, v%d" % (vLsum, vt1))
    a("v_add_f32 v%d, v%d, v%d" % (vLsum, vLsum, vt1))
    a("v_rcp_f32 v%d, v%d" % (vF, vLsum))
    a("s_nop 0")
    for dt in range(4):
        for jj in range(2):
            src = vO + 16*dt + 8*jj
            base = vS + 16*dt + 8*jj
            for i in range(8):
                a("v_mul_f32 v%d, v%d, v%d" % (src+i, src+i, vF))
            for i in range(4):
                a("v_cvt_pk_bf16_f32 v%d, v%d, v%d" % (base+i, src+2*i, src+2*i+1))
            a("buffer_store_dwordx4 %s, v%d, s[%d:%d], 0 offen offset:%d %s" % (vr(base, 4), vOst, sO, sO+3, dt*1024+jj*512, "nt" if "ntst" in OPT else ""))
    a.mute = False
    a("s_waitcnt vmcnt(8)")
    a("v_lshrrev_b32 v%d, 4, v%d" % (vt1, vL))
    a("v_and_b32 v%d, 15, v%d" % (vt2, vL))
    a("v_lshrrev_b32 v%d, 2, v%d" % (vt3, vt2))
    a("v_lshl_add_u32 v%d, v%d, 3, v%d" % (vt1, vt1, vt3))
    a("s_movk_i32 s%d, 160" % sT2)
    a("v_mul_lo_u32 v%d, v%d, s%d" % (vt1, vt1, sT2))
    a("v_and_b32 v%d, 3, v%d" % (vt2, vt2))
    a("v_lshl_add_u32 v%d, v%d, 3, v%d" % (vt1, vt2, vt1))
    a("v_add_u32 v%d, s%d, v%d" % (vt1, sJl, vt1))
    a("s_lshl_b32 s%d, s2, 2" % sT0); a("s_add_u32 s%d, s%d, s%d" % (sT0, sT0, sWv))
    a("s_and_b32 s%d, s%d, 7" % (sT1, sT0)); a("s_lshr_b32 s%d, s%d, 3" % (sT0, sT0))
    a("s_mul_i32 s%d, s%d, %d" % (sT1, sT1, 5*131072)); a("s_lshl_b32 s%d, s%d, 10" % (sT0, sT0))
    a("s_add_u32 s%d, s%d, s%d" % (sT0, sT0, sT1)); a("s_add_u32 s%d, s%d, %d" % (sT0, sT0, OFF_WOT))
    a("v_lshlrev_b32 v%d, 4, v%d" % (vt2, vL))
    for nt in range(5):
        a("ds_read_b64_tr_b16 %s, v%d offset:%d" % (vr(vFB+4*nt, 2), vt1, nt*32))
        a("ds_read_b64_tr_b16 %s, v%d offset:%d" % (vr(vFB+4*nt+2, 2), vt1, nt*32+640))
    a("s_waitcnt lgkmcnt(0)")
    for nt in range(5):
        a("s_add_u32 s%d, s%d, %d" % (sT1, sT0, nt*131072))
        a("buffer_store_dwordx4 %s, v%d, s[%d:%d], s%d offen %s" % (vr(vFB+4*nt, 4), vt2, sO, sO+3, sT1, "nt" if "ntst" in OPT else ""))
    stamp()
    stamp(True)
    a.lab("k1_done")
    a("s_endpgm")

def gen_k2(a):
    nst = [0]
    def stamp(real=False):
        if "stamp2" not in OPT: return
        a("s_memrealtime s[60:61]" if real else "s_memtime s[60:61]")
        a("s_waitcnt lgkmcnt(0)")
        a("v_mov_b32 v6, s60")
        a("s_lshl_b32 s62, s2, 8")
        a("s_add_u32 s62, s62, %d" % (nst[0]*4))
        a("s_mov_b64 s[64:65], exec")
        a("s_mov_b64 exec, 1")
        a("v_mov_b32 v7, 0")
        a("buffer_store_dword v6, v7, s[68:71], s62 offen")
        a("s_mov_b64 exec, s[64:65]")
        nst[0] += 1
    sWS, sP, sOut = 8, 12, 40
    sB, sNB, sKS, sWv = 16, 17, 18, 19
    sT0, sT1, sT2 = 20, 21, 22
    sRot = 23
    sA = 24
    sBq = 32
    v0off, v1off = 1, 2
    vF = 8
    DEPTH = 4
    a.lab("k2_kernel")
    a("s_cmp_ge_u32 s2, 256")
    a("s_cbranch_scc1 k2_done")
    a("s_load_dwordx2 s[4:5], s[0:1], 56")
    a("s_load_dwordx4 s[44:47], s[0:1], 32")
    a("s_load_dwordx2 s[48:49], s[0:1], 48")
    a("v_and_b32 v3, 63, v0")
    a("v_lshrrev_b32 v4, 6, v0")
    a("s_nop 0")
    a("v_readfirstlane_b32 s%d, v4" % sWv)
    a("s_and_b32 s%d, s2, 3" % sKS)
    a("s_lshr_b32 s%d, s2, 2" % sT0); a("s_and_b32 s%d, s%d, 1" % (sT0, sT0)); a("s_lshl_b32 s%d, s%d, 2" % (sT0, sT0))
    a("s_lshr_b32 s%d, s2, 3" % sT1); a("s_and_b32 s%d, s%d, 3" % (sB, sT1))
    a("s_lshl_b32 s%d, s%d, 1" % (sRot, sB))
    a("s_add_u32 s%d, s%d, s%d" % (sB, sB, sT0))
    a("s_lshr_b32 s%d, s2, 5" % sNB)
    a("s_add_u32 s%d, s%d, s%d" % (sRot, sRot, sNB))
    a("v_lshlrev_b32 v%d, 4, v3" % v0off)
    a("s_waitcnt lgkmcnt(0)")
    a("s_mov_b32 s%d, s4" % sWS); a("s_and_b32 s%d, s5, 0xffff" % (sWS+1)); a("s_mov_b32 s%d, %d" % (sWS+2, OFF_PART)); a("s_mov_b32 s%d, 0x20000" % (sWS+3))
    a("s_add_u32 s%d, s4, %d" % (sP, OFF_PART)); a("s_addc_u32 s%d, s5, 0" % (sP+1)); a("s_and_b32 s%d, s%d, 0xffff" % (sP+1, sP+1))
    a("s_mov_b32 s%d, %d" % (sP+2, 4*64*35*1024)); a("s_mov_b32 s%d, 0x20000" % (sP+3))
    a("s_mov_b32 s%d, s46" % sOut); a("s_and_b32 s%d, s47, 0xffff" % (sOut+1)); a("s_mov_b32 s%d, %d" % (sOut+2, 896*640*2)); a("s_mov_b32 s%d, 0x20000" % (sOut+3))
    a("s_mov_b32 s52, s48"); a("s_and_b32 s53, s49, 0xffff"); a("s_mov_b32 s54, 256"); a("s_mov_b32 s55, 0x20000")
    a("s_add_u32 s68, s4, %d" % OFF_DBG); a("s_addc_u32 s69, s5, 0"); a("s_and_b32 s69, s69, 0xffff"); a("s_mov_b32 s70, 65536"); a("s_mov_b32 s71, 0x20000")
    stamp(True); stamp()
    a("s_lshl_b32 s%d, s%d, 5" % (sT0, sKS)); a("s_lshl_b32 s%d, s%d, 3" % (sT1, sWv)); a("s_add_u32 s%d, s%d, s%d" % (sT0, sT0, sT1))
    a("s_lshl_b32 s%d, s%d, 10" % (sT0, sT0))
    a("s_mul_i32 s%d, s%d, %d" % (sT1, sNB, 5*131072)); a("s_add_u32 s%d, s%d, s%d" % (sT1, sT1, sT0)); a("s_add_u32 s%d, s%d, %d" % (sT1, sT1, OFF_WOT))
    for n in range(5): a("s_add_u32 s%d, s%d, %d" % (sA+n, sT1, n*131072))
    a("s_mul_i32 s%d, s%d, %d" % (sT1, sB, 7*131072)); a("s_add_u32 s%d, s%d, s%d" % (sT1, sT1, sT0))
    for r in range(7): a("s_add_u32 s%d, s%d, %d" % (sBq+r, sT1, r*131072))
    def ld(k):
        buf = k % DEPTH
        a("s_add_u32 s%d, s%d, %d" % (sT2, sRot, k)); a("s_and_b32 s%d, s%d, 7" % (sT2, sT2)); a("s_lshl_b32 s%d, s%d, 10" % (sT2, sT2))
        a("v_add_u32 v%d, s%d, v%d" % (v1off, sT2, v0off))
        for f in range(12):
            sb = sA+f if f < 5 else sBq+f-5
            a("buffer_load_dwordx4 %s, v%d, s[%d:%d], s%d offen %s" % (vr(vF+(buf*12+f)*4, 4), v1off, sWS, sWS+3, sb, "nt" if "ntk2" in OPT else ""))
    for k in range(DEPTH): ld(k)
    for k in range(8):
        buf = k % DEPTH
        rem = min(8, k+DEPTH) - (k+1)
        a("s_waitcnt vmcnt(%d)" % (12*rem))
        if k in (0, 3): stamp()
        for n in range(5):
            for r in range(7):
                t = n*7 + r
                c = "0" if k == 0 else ar(4*t, 4)
                a("v_mfma_f32_16x16x32_bf16 %s, %s, %s, %s" % (ar(4*t, 4), vr(vF+(buf*12+n)*4, 4), vr(vF+(buf*12+5+r)*4, 4), c))
        if k + DEPTH < 8: ld(k+DEPTH)
    a.nop(10)
    stamp()
    a("s_mul_i32 s%d, s%d, %d" % (sT0, sWv, 35*1024))
    a("v_add_u32 v4, s%d, v%d" % (sT0, v0off))
    for t in range(35):
        a("ds_write_b128 v4, %s offset:%d" % (ar(4*t, 4), t*1024))
    a("s_waitcnt lgkmcnt(0)")
    a("s_barrier")
    sBN = 56
    a("s_lshl_b32 s%d, s%d, 3" % (sBN, sB)); a("s_add_u32 s%d, s%d, s%d" % (sBN, sBN, sNB))
    a("s_lshl_b32 s%d, s%d, 10" % (sT1, sWv))
    a("s_mul_i32 s%d, s%d, %d" % (sT0, sBN, 35*1024)); a("s_add_u32 s%d, s%d, s%d" % (sT0, sT0, sT1))
    sPB = 57
    a("s_mov_b32 s%d, s%d" % (sPB, sT0))
    a("s_mul_i32 s%d, s%d, %d" % (sT2, sKS, 64*35*1024)); a("s_add_u32 s%d, s%d, s%d" % (sT0, sT0, sT2))
    a("v_add_u32 v4, s%d, v%d" % (sT1, v0off))
    a("v_add_u32 v5, %d, v4" % (35*1024))
    a("v_add_u32 v6, %d, v4" % (2*35*1024))
    a("v_add_u32 v7, %d, v4" % (3*35*1024))
    for i in range(9):
        o = i*4096
        for wv, vreg in enumerate((4, 5, 6, 7)):
            a("ds_read_b128 v[%d:%d], v%d offset:%d" % (64+i*16+4*wv, 67+i*16+4*wv, vreg, o))
    for i in range(9):
        o = i*4096
        a("s_waitcnt lgkmcnt(%d)" % min(15, 4*(8-i)))
        b0 = 64+i*16
        for e in range(4):
            a("v_add_f32 v%d, v%d, v%d" % (b0+e, b0+e, b0+4+e))
            a("v_add_f32 v%d, v%d, v%d" % (b0+8+e, b0+8+e, b0+12+e))
        d = 24 + 4*i
        for e in range(4):
            a("v_add_f32 v%d, v%d, v%d" % (d+e, b0+e, b0+8+e))
        if i == 8:
            a("s_cmp_ge_u32 s%d, 3" % sWv)
            a("s_cbranch_scc1 k2_st_done")
        a("s_add_u32 s%d, s%d, %d" % (sT1, sT0, o))
        a("buffer_store_dwordx4 v[%d:%d], v%d, s[%d:%d], s%d offen sc0 sc1" % (d, d+3, v0off, sP, sP+3, sT1))
    a.lab("k2_st_done")
    stamp()
    a("s_waitcnt vmcnt(0)")
    a("s_barrier")
    stamp()
    a("s_cmp_lg_u32 s%d, 0" % sWv)
    a("s_cbranch_scc1 k2_wait")
    a("s_lshl_b32 s%d, s%d, 2" % (sT1, sBN))
    a("v_mov_b32 v4, 1")
    a("v_mov_b32 v5, s%d" % sT1)
    a("s_mov_b64 s[58:59], exec")
    a("s_mov_b64 exec, 1")
    a("buffer_atomic_add v4, v5, s[52:55], 0 offen sc0 sc1")
    a("s_waitcnt vmcnt(0)")
    a("v_mov_b32 v5, 0")
    a("ds_write_b32 v5, v4")
    a("s_waitcnt lgkmcnt(0)")
    a("s_mov_b64 exec, s[58:59]")
    a.lab("k2_wait")
    a("s_barrier")
    a("v_mov_b32 v5, 0")
    a("ds_read_b32 v4, v5")
    a("s_waitcnt lgkmcnt(0)")
    a("s_nop 0")
    a("v_readfirstlane_b32 s%d, v4" % sT1)
    a("s_nop 3")
    stamp()
    a("s_cmp_lg_u32 s%d, 3" % sT1)
    a("s_cbranch_scc1 k2_done")
    a("v_and_b32 v4, 15, v3")
    a("s_mul_i32 s%d, s%d, 112" % (sT1, sB))
    a("v_add_u32 v4, s%d, v4" % sT1)
    a("s_movk_i32 s%d, 1280" % sT1)
    a("v_mul_lo_u32 v4, v4, s%d" % sT1)
    a("v_lshrrev_b32 v5, 4, v3")
    a("v_lshl_add_u32 v4, v5, 3, v4")
    a("s_mul_i32 s%d, s%d, 160" % (sT1, sNB))
    a("v_add_u32 v4, s%d, v4" % sT1)
    def tile_loads(i):
        for ks in range(4):
            a("s_add_u32 s%d, s%d, %d" % (sT1, sPB, ks*64*35*1024 + i*4096))
            d = 64 + i*16 + 4*ks
            a("buffer_load_dwordx4 v[%d:%d], v%d, s[%d:%d], s%d offen sc0 sc1" % (d, d+3, v0off, sP, sP+3, sT1))
    def tile_fin(i):
        d = 64 + i*16
        a("s_add_u32 s%d, s%d, %d" % (sT0, sWv, 4*i))
        a("s_mul_i32 s%d, s%d, 37" % (sT1, sT0)); a("s_lshr_b32 s%d, s%d, 8" % (sT1, sT1))
        a("s_mul_i32 s%d, s%d, 7" % (sT2, sT1)); a("s_sub_u32 s%d, s%d, s%d" % (sT2, sT0, sT2))
        a("s_mul_i32 s%d, s%d, %d" % (sT2, sT2, 16*1280)); a("s_lshl_b32 s%d, s%d, 5" % (sT1, sT1)); a("s_add_u32 s%d, s%d, s%d" % (sT1, sT1, sT2))
        for e in range(4):
            a("v_add_f32 v%d, v%d, v%d" % (d+e, d+e, d+4+e))
            a("v_add_f32 v%d, v%d, v%d" % (d+8+e, d+8+e, d+12+e))
        for e in range(4):
            a("v_add_f32 v%d, v%d, v%d" % (d+e, d+e, d+8+e))
        a("v_cvt_pk_bf16_f32 v%d, v%d, v%d" % (d+4, d, d+1))
        a("v_cvt_pk_bf16_f32 v%d, v%d, v%d" % (d+5, d+2, d+3))
        a("buffer_store_dwordx2 v[%d:%d], v4, s[%d:%d], s%d offen" % (d+4, d+5, sOut, sOut+3, sT1))
    for i in range(9): tile_loads(i)
    for i in range(8):
        a("s_waitcnt vmcnt(%d)" % (4*(8-i) + i))
        tile_fin(i)
    a("s_cmp_ge_u32 s%d, 3" % sWv)
    a("s_cbranch_scc1 k2_done")
    a("s_waitcnt vmcnt(8)")
    tile_fin(8)
    stamp(); stamp(True)
    a.lab("k2_done")
    a("s_endpgm")

def gen_k3(a):
    a.lab("k3_kernel")
    a("s_cmp_ge_u32 s2, 560")
    a("s_cbranch_scc1 k3_done")
    a("s_load_dwordx2 s[4:5], s[0:1], 56")
    a("s_load_dwordx2 s[6:7], s[0:1], 40")
    a("v_and_b32 v3, 63, v0")
    a("v_lshrrev_b32 v4, 6, v0")
    a("s_nop 0")
    a("v_readfirstlane_b32 s16, v4")
    a("s_lshl_b32 s17, s2, 2")
    a("s_add_u32 s17, s17, s16")
    a("s_mul_i32 s18, s17, 29960"); a("s_lshr_b32 s18, s18, 20")
    a("s_mul_i32 s19, s18, 35"); a("s_sub_u32 s19, s17, s19")
    a("s_mul_i32 s20, s19, 37"); a("s_lshr_b32 s20, s20, 8")
    a("s_mul_i32 s21, s20, 7"); a("s_sub_u32 s21, s19, s21")
    a("s_lshr_b32 s22, s18, 3")
    a("s_and_b32 s23, s18, 7")
    a("s_waitcnt lgkmcnt(0)")
    a("s_add_u32 s8, s4, %d" % OFF_PART); a("s_addc_u32 s9, s5, 0"); a("s_and_b32 s9, s9, 0xffff")
    a("s_mov_b32 s10, %d" % (4*64*35*1024)); a("s_mov_b32 s11, 0x20000")
    a("s_mov_b32 s12, s6"); a("s_and_b32 s13, s7, 0xffff"); a("s_mov_b32 s14, %d" % (896*640*2)); a("s_mov_b32 s15, 0x20000")
    a("v_lshlrev_b32 v1, 4, v3")
    a("s_lshl_b32 s24, s17, 10")
    for ks in range(4):
        a("s_add_u32 s25, s24, %d" % (ks*64*35*1024))
        a("buffer_load_dwordx4 v[%d:%d], v1, s[8:11], s25 offen" % (8+4*ks, 11+4*ks))
    a("s_mul_i32 s26, s22, 112"); a("s_lshl_b32 s27, s21, 4"); a("s_add_u32 s26, s26, s27")
    a("s_mul_i32 s27, s23, 80"); a("s_lshl_b32 s28, s20, 4"); a("s_add_u32 s27, s27, s28")
    a("v_and_b32 v4, 15, v3")
    a("v_add_u32 v4, s26, v4")
    a("s_mov_b32 s28, 1280")
    a("v_mul_lo_u32 v4, v4, s28")
    a("v_lshrrev_b32 v5, 4, v3")
    a("v_lshlrev_b32 v5, 3, v5")
    a("v_add_u32 v4, v4, v5")
    a("s_lshl_b32 s27, s27, 1")
    a("v_add_u32 v4, s27, v4")
    a("s_waitcnt vmcnt(0)")
    for e in range(4):
        a("v_add_f32 v%d, v%d, v%d" % (8+e, 8+e, 12+e))
        a("v_add_f32 v%d, v%d, v%d" % (16+e, 16+e, 20+e))
    for e in range(4):
        a("v_add_f32 v%d, v%d, v%d" % (8+e, 8+e, 16+e))
    a("v_cvt_pk_bf16_f32 v24, v8, v9")
    a("v_cvt_pk_bf16_f32 v25, v10, v11")
    a("buffer_store_dwordx2 v[24:25], v4, s[12:15], 0 offen")
    a.lab("k3_done")
    a("s_endpgm")

HDR = """; Kernarg layout (64 bytes): x, k_cache, v_cache, wq, wo, d_out, d_debug, d_ws
; @launch kernel=k1_kernel grid=(256,1,1) block=(256,1,1) lds=163840
; @launch kernel=k2_kernel grid=(256,1,1) block=(256,1,1) lds=143360
.amdgcn_target "amdgcn-amd-amdhsa--gfx950"
.text
"""
def kd(name, vgpr, sgpr, acc):
    return """.amdhsa_kernel %s
  .amdhsa_next_free_vgpr %d
  .amdhsa_next_free_sgpr %d
  .amdhsa_accum_offset %d
  .amdhsa_group_segment_fixed_size 0
  .amdhsa_kernarg_size 64
  .amdhsa_user_sgpr_count 2
  .amdhsa_user_sgpr_kernarg_segment_ptr 1
  .amdhsa_system_sgpr_workgroup_id_x 1
.end_amdhsa_kernel
""" % (name, vgpr, sgpr, acc)

def main():
    out = HDR
    for name, fn in (("k1_kernel", gen_k1), ("k2_kernel", gen_k2)):
        a = A(); fn(a)
        out += ".globl %s\n.p2align 8\n.type %s,@function\n" % (name, name) + a.text()
    import struct, math
    cbits = struct.unpack("<I", struct.pack("<f", 128**-0.5 * math.log2(math.e)))[0]
    out = out.replace("0x3e0293ee", "0x%08x" % cbits)
    out += '.section .rodata,"a"\n.p2align 6\n'
    out += kd("k1_kernel", 512, 102, 256)
    out += ".p2align 6\n" + kd("k2_kernel", 348, 102, 208)
    open(sys.argv[1] if len(sys.argv) > 1 else "standalone__gqa_block_cached__near_ridge.s", "w").write(out)

main()
```
